```python
import torch

def _softmax(x, axis=-1):
    return torch.softmax(x, dim=axis)
def _gelu(x):
    return torch.nn.functional.gelu(x, approximate="tanh")
def _silu(x):
    return torch.nn.functional.silu(x)
def _sigmoid(x):
    return torch.sigmoid(x)
def _layernorm(x, axis=-1, eps=1e-5):
    m = x.mean(dim=axis, keepdim=True)
    v = x.var(dim=axis, keepdim=True, unbiased=False)
    return (x - m) / torch.sqrt(v + eps)
def _scatter_add(tgt, idx, src, axis=0):
    return tgt.clone().index_add_(axis, idx, src)
def _segment_sum(src, seg, n):
    out = torch.zeros((n,) + src.shape[1:], dtype=src.dtype)
    return out.index_add_(0, seg, src)
def _pad(x, pw):
    flat = tuple(v for pair in reversed(pw) for v in pair)
    return torch.nn.functional.pad(x, flat)

kernel_name = 'interleave_layers__linear_attn_block__mixer_channel_mlp__prompt'

def setup_inputs():

    _w = (lambda a: (lambda t: t.to(torch.bfloat16) if t.is_floating_point() else t)(torch.as_tensor(a)))
    def _A_setup():
        B, S, D = 1, 2048, 512
        return {
            "x": _w((lambda *s: torch.randn(*s, dtype=torch.bfloat16) * 0.05)(B, S, D)),
            "wqkv": _w((lambda *s: torch.randn(*s, dtype=torch.bfloat16) * 0.1)(D, 3 * D)),
            "wo": _w((lambda *s: torch.randn(*s, dtype=torch.bfloat16) * 0.05)(D, D)),
        }
    _A_in = _A_setup()

    def _B_setup():
        B, S, D, F = 1, 2048, 512, 1792
        return {
            "x": _w((lambda *s: torch.randn(*s, dtype=torch.bfloat16) * 0.05)(B, S, D)),
            "w1": _w((lambda *s: torch.randn(*s, dtype=torch.bfloat16) * 3.2)(D, F) * (D ** -0.5)),
            "b1": _w((lambda *s: torch.randn(*s, dtype=torch.bfloat16) * 0.8)(F)),
            "w2": _w((lambda *s: torch.randn(*s, dtype=torch.bfloat16) * 0.8)(F, D) * (F ** -0.5)),
            "b2": _w((lambda *s: torch.randn(*s, dtype=torch.bfloat16) * 0.8)(D)),
        }
    _B_in = _B_setup()

    return {
        "A_x": _A_in["x"],
        "A_wqkv": _A_in["wqkv"],
        "A_wo": _A_in["wo"],
        "B_x": _B_in["x"],
        "B_w1": _B_in["w1"],
        "B_b1": _B_in["b1"],
        "B_w2": _B_in["w2"],
        "B_b2": _B_in["b2"],
    }

def reference(A_x, A_wqkv, A_wo, B_x, B_w1, B_b1, B_w2, B_b2):
    def _A_ref(x, wqkv, wo):
        B, S, D = x.shape
        H = 32; Dh = D // H
        qkv = (lambda x, *d: x.permute(*d))((x @ wqkv).reshape(B, S, 3, H, Dh), 2, 0, 3, 1, 4)
        q, k, v = qkv[0], qkv[1], qkv[2]
        phi = lambda t: torch.where(t > 0, t + 1, torch.exp(t)) + 1e-6
        pq, pk = phi(q), phi(k)
        kv = torch.einsum("bhsd,bhse->bhde", pk, v)
        z = torch.einsum("bhsd->bhd", pk)
        num = torch.einsum("bhqd,bhde->bhqe", pq, kv)
        den = torch.einsum("bhqd,bhd->bhq", pq, z)[..., None] + 1e-6
        o = num / den
        return (lambda x, *d: x.permute(*d))(o, 0, 2, 1, 3).reshape(B, S, D) @ wo

    def _B_ref(x, w1, b1, w2, b2):
        y = _layernorm(x, axis=-1)
        h = _gelu(torch.einsum("bsd,df->bsf", y, w1) + b1)
        return torch.einsum("bsf,fd->bsd", h, w2) + b2

    x = A_x
    x = x + _A_ref(_layernorm(x, axis=-1), A_wqkv, A_wo)
    x = x + _B_ref(_layernorm(x, axis=-1), B_w1, B_b1, B_w2, B_b2)
    x = x + _A_ref(_layernorm(x, axis=-1), A_wqkv, A_wo)
    x = x + _B_ref(_layernorm(x, axis=-1), B_w1, B_b1, B_w2, B_b2)
    return x
```

```python
import re
TRANS = ("v_exp_f32", "v_rcp_f32", "v_rsq_f32", "v_log_f32", "v_sqrt_f32")
def regs(tok):
    tok = tok.strip()
    tok = re.sub(r"^-|^abs\(|\)$", "", tok)
    m = re.fullmatch(r"([vas])(\d+)", tok)
    if m: return {(m.group(1), int(m.group(2)))}
    m = re.fullmatch(r"([vas])\[(\d+):(\d+)\]", tok)
    if m: return {(m.group(1), i) for i in range(int(m.group(2)), int(m.group(3)) + 1)}
    if tok == "vcc": return {("s", 106), ("s", 107)}
    if tok == "m0": return {("m", 0)}
    if tok == "exec": return {("e", 0)}
    return set()
class I:
    def __init__(s, text):
        s.text = text; t = text.split(";")[0].strip()
        s.label = t.endswith(":") or t.startswith(".")
        p = t.split(None, 1); s.op = p[0] if p else ""
        ops = []
        if len(p) > 1 and not s.label:
            ops = [o.strip().split(" ")[0] for o in re.split(r",(?![^\[]*\])", p[1])]
        s.ops = ops; op = s.op
        s.kind = "other"; s.w = set(); s.r = set(); s.srcc = set(); s.sdata = set()
        R = [regs(o) for o in ops]
        U = lambda l: set().union(*l) if l else set()
        if op.startswith("v_mfma"):
            s.kind = "mfma"; s.w = R[0]; s.r = U(R[1:]); s.srcc = R[3]; s.ab = R[1] | R[2]
        elif op.startswith("v_"):
            s.kind = "valu"; s.w = set(R[0]); s.r = U(R[1:])
            if op.startswith(("v_permlane16_swap", "v_permlane32_swap")): s.w = R[0] | R[1]; s.r = R[0] | R[1]
            if op.startswith(("v_fmac", "v_dot2c")): s.r |= R[0]
            if op.startswith("v_cndmask") and len(ops) == 3: s.r |= regs("vcc")
        elif op.startswith("ds_read"): s.kind = "ds"; s.w = R[0]; s.r = U(R[1:])
        elif op.startswith("ds_"): s.kind = "ds"; s.r = U(R)
        elif op.startswith(("buffer_load", "global_load")):
            s.kind = "vmem"
            if " lds" in t: s.r = U(R) | {("m", 0)}; s.dma = True
            else: s.w = R[0]; s.r = U(R[1:])
        elif op.startswith(("buffer_store", "buffer_atomic")):
            s.kind = "vmem"; s.r = U(R)
            if "x4" in op or "x3" in op: s.sdata = R[0]
        elif op.startswith(("global_store", "global_atomic")):
            s.kind = "vmem"; s.r = U(R)
            if "x4" in op or "x3" in op: s.sdata = R[1]
        elif op.startswith("s_") and ops and not op.startswith(("s_cmp", "s_cbranch", "s_branch", "s_waitcnt", "s_nop", "s_barrier", "s_sleep", "s_setprio")):
            s.kind = "salu"; s.w = R[0]; s.r = U(R[1:])
        s.states = (int(ops[0]) + 1) if op == "s_nop" else (0 if s.label or not op else 1)
def need(p, c):
    n = 0
    vw = {x for x in p.w if x[0] in "va"}; sw = {x for x in p.w if x[0] == "s"}
    if p.kind == "valu":
        if c.kind == "mfma" and vw & c.r: n = max(n, 2)
        if c.op.startswith("v_permlane") and vw & c.r: n = max(n, 2)
        if c.op.startswith(("v_readfirstlane", "v_readlane")) and vw & c.r: n = max(n, 1)
        if "_dpp" in c.op and vw & c.r: n = max(n, 2)
        if p.op.replace("_e64", "").replace("_e32", "") in TRANS and c.kind in ("valu", "mfma") and vw & c.r: n = max(n, 1)
        if sw and c.kind == "vmem" and sw & c.r: n = max(n, 5)
        if sw and c.kind == "valu" and sw & c.r: n = max(n, 2)
        if sw and c.kind == "salu" and sw & c.r: n = max(n, 1)
    if c.kind == "mfma" and p.op.startswith("v_pk_") and re.search(r"op_sel:\[[0,]*1", p.text): n = max(n, 1)
    if p.op.startswith("v_dot2") and c.kind in ("valu", "mfma", "ds", "vmem") and vw & (c.r | c.w):
        if not (c.op == p.op and not (vw & (regs(c.ops[1]) | regs(c.ops[2])))): n = max(n, 3)
    if p.kind == "mfma":
        P = 12 if "32x32" in p.op else 8
        if c.kind == "mfma":
            if p.w & c.ab: n = max(n, P)
            if p.w & c.srcc and (p.w != c.srcc): n = max(n, P - 2)
            if p.w & c.w and not (p.w & c.srcc): n = max(n, P)
        elif c.kind in ("valu", "ds", "vmem") and p.w & (c.r | c.w): n = max(n, P)
        if c.kind == "valu" and p.srcc & c.w: n = max(n, 7 if P == 12 else 3)
    if p.kind == "salu" and ("m", 0) in p.w and ("m", 0) in c.r and c.kind == "vmem": n = max(n, 1)
    if p.sdata and c.kind in ("valu", "mfma", "ds", "vmem") and p.sdata & c.w: n = max(n, 2)
    return n
def fix_hazards(lines):
    out = []; nins = 0
    for t in lines:
        c = I(t)
        if c.states and c.op != "s_nop":
            d = 0; req = 0
            for p in reversed(out):
                if d >= 13: break
                r = need(p, c) - d
                if r > req: req = r
                d += p.states
            if c.kind == "mfma" and req == 0 and len(out) > 1 and out[-1].op == "s_waitcnt":
                q = [p for p in out[-4:] if p.op != "s_waitcnt"]
                if q and q[-1].op.startswith("v_pk_") and re.search(r"op_sel:\[[0,]*1", q[-1].text): req = 1
            if req > 0:
                out.append(I(f"s_nop {req-1}")); nins += 1
        out.append(c)
    return [o.text for o in out], nins
class A:
    def __init__(s): s.L = []; s.n = 0
    def __call__(s, t):
        for l in t.split("\n"):
            if l.strip(): s.L.append(l.strip())
    def lab(s, p="L"): s.n += 1; return f"{p}{s.n}"
def v(b, n=1): return f"v{b}" if n == 1 else f"v[{b}:{b+n-1}]"
def ag(b, n=1): return f"a{b}" if n == 1 else f"a[{b}:{b+n-1}]"
def sr(b, n=1): return f"s{b}" if n == 1 else f"s[{b}:{b+n-1}]"
def merge(main, fill, every=1, start=0):
    out = []; fi = 0
    for k, m in enumerate(main):
        out.append(m)
        if k >= start and (k - start) % every == every - 1 and fi < len(fill): out.append(fill[fi]); fi += 1
    out += fill[fi:]
    return out

def resolve_vm(lines):
    out = []
    for k, l in enumerate(lines):
        if l.startswith("VMWAIT"):
            tag = "@" + l.split()[1]; n = 0; j = k - 1
            while not lines[j].endswith(tag):
                t = lines[j]
                assert j >= 0 and not t.endswith(":") and not t.startswith(("s_cbranch", "s_branch")), (l, t)
                if t.startswith(("buffer_", "global_")): n += 1
                j -= 1
            assert n < 64, (l, n)
            l = f"s_waitcnt vmcnt({n})"
        out.append(l)
    return out
```

```python
import sys, struct, os
RU = 0
SC = ""
MIX = "s46"
sys.path.insert(0, "dev")
from asmlib import *
NAME = "interleave_layers__linear_attn_block__mixer_channel_mlp__prompt"
def f2u(x): return struct.unpack("<I", struct.pack("<f", x))[0]
def hx(x): return "0x%08x" % f2u(x)
LOG2E = 1.4426950408889634
sX, sWQ, sWO, sW1, sW2, sWS, sOUT, sB1, sB2 = [sr(8 + 4 * k, 4) for k in range(9)]
sDBG = "s[44:45]"
W, RG, J8, SG, J16, WG = "s48", "s49", "s50", "s51", "s52", "s53"
sT, sT2, sT3, sCNT, sBase, sBase2 = "s54", "s55", "s56", "s57", "s58", "s59"
vL16, vT0, vU, vCOL, RES = 255, 254, 253, 252, 244
VO, TB, ST, ACC, BR = 232, 224, 236, 128, 192
aCSKV, aCSQ, aONE = 224, 228, 236
def FL(L): return L * 0x10000
def KVACC(L): return 0x20000 + L * 0x8800
def ST1(L): return 0x40000 + RU * L * 0x20000
ST2 = 0x40000
def PQ(L): return 0x100000 + RU * L * 0x200000
def X1(L): return 0x500000 + RU * L * 0x200000
X2 = 0x500000
def HH(L): return 0xB00000 + RU * L * 0x700000
TAB = 39 * 4096
CNT = TAB
ALPHA = (2 * 0.7978845608028654 * LOG2E * 0.044715) ** (1 / 3)
CS1, B1T, B2T, WST = TAB + 1024, TAB + 1536, TAB + 2048, TAB + 2560
SCR = 32 * 4096
a = A()
def mfma(d, s0, s1, c, k16=False):
    return f"v_mfma_f32_16x16x{'16' if k16 else '32'}_bf16 {d}, {s0}, {s1}, {c}"
def per_wave(fn, waves=(0, 1, 2, 3)):
    end = a.lab("PW")
    for w in waves:
        nx = a.lab("PW")
        a(f"s_cmp_lg_u32 {W}, {w}\ns_cbranch_scc1 {nx}")
        fn(w)
        a(f"s_branch {end}\n{nx}:")
    a(f"{end}:")
def set_vo(stride):
    a(f"v_mul_u32_u24 v{VO}, {stride}, v{vU}\nv_add_u32 v{VO}, v{VO}, v{vCOL}")
    for j in range(1, 4): a(f"v_add_u32 v{VO+j}, {j*(8*stride-1024)}, v{VO}")
SKIP = [0]
def dma_page(srd, base, imm, page):
    if SKIP[0]: return
    a(f"s_mov_b32 m0, {page*4096}\ns_add_u32 {sT}, {base}, {imm}")
    for j in range(4): a(f"buffer_load_dwordx4 v{VO+j}, {srd}, {sT} offen offset:{j*1024} lds")
def dma_split(srd, base, items, waves):
    per_wave(lambda w: [dma_page(srd, base, i, p) for i, p in items[waves.index(w)::len(waves)]], waves)
def trb(j, win): return TB + (j & 3) + 4 * win
def tr(dst, areg, off): return f"ds_read_b64_tr_b16 {dst}, v{areg} offset:{off}"
def signal(soff):
    e = a.lab("SG"); m = a.lab("SG")
    a(f"s_mov_b64 exec, 1\nv_mov_b32 v{ST+7}, 1\ns_cmp_lg_u32 {MIX}, 0\ns_cbranch_scc1 {m}")
    a(f"buffer_store_dword v{ST+7}, off, {sWS}, {soff}\ns_branch {e}")
    a(f"{m}:\nbuffer_wbl2 sc1\ns_waitcnt vmcnt(0)\nbuffer_store_dword v{ST+7}, off, {sWS}, {soff} sc1\n{e}:\ns_mov_b64 exec, -1")
def poll_addr(kind):
    t = TB + 7
    if kind == "pq": a(f"v_bfe_u32 v{t}, v{vL16}, 4, 3\nv_lshlrev_b32 v{t}, 2, v{t}")
    elif kind == "kv": a(f"v_lshlrev_b32 v{t}, 3, v{vL16}")
    else: a(f"v_bfe_u32 v{t}, v{vL16}, 5, {kind}\nv_lshlrev_b32 v{t}, 4, v{t}\nv_bfe_u32 v{t-1}, v{vL16}, 4, 1\nv_lshl_add_u32 v{t}, v{t-1}, 2, v{t}")
def poll(soff):
    lp = a.lab("PL"); ok = a.lab("PL")
    a(f"s_mov_b32 {sCNT}, 100000\n{lp}:\nbuffer_load_dword v{TB+6}, v{TB+7}, {sWS}, {soff} offen sc1\ns_waitcnt vmcnt(0)")
    a(f"v_cmp_ne_u32 vcc, 1, v{TB+6}\ns_sub_u32 {sCNT}, {sCNT}, 1\ns_nop 3\ns_cbranch_vccz {ok}")
    a(f"s_cmp_lg_u32 {sCNT}, 0\ns_cbranch_scc1 {lp}\n{ok}:")
def capture(fn):
    sv = a.L; a.L = []; fn(); r = a.L; a.L = sv; return r
def sprinkle(main, fill, every):
    fill = list(fill)
    for k, l in enumerate(main):
        a(l)
        if k % every == every - 1:
            while fill:
                f = fill.pop(0); a(f)
                if f.startswith("buffer"): break
    return fill
def dma_lines(srd, base, imm, page):
    return [f"s_mov_b32 m0, {page*4096}", f"s_add_u32 {sT}, {base}, {imm}"] + [f"buffer_load_dwordx4 v{VO+j}, {srd}, {sT} offen offset:{j*1024} lds" for j in range(4)]
def dma_wave(srd, gbase, lbase, items):
    o = []
    for gi, li in items:
        o += [f"s_add_u32 m0, {lbase}, {li}", f"s_add_u32 s47, {gbase}, {gi}"] + [f"buffer_load_dwordx4 v{VO+j}, {srd}, s47 offen offset:{j*1024} lds" for j in range(4)]
    return o
def xg_reduce(regs, tmp):
    for op in ("v_permlane16_swap_b32", "v_permlane32_swap_b32"):
        for k, r in enumerate(regs): a(f"v_mov_b32 v{tmp+k}, v{r}")
        for k, r in enumerate(regs): a(f"{op} v{tmp+k}, v{r}")
        for k, r in enumerate(regs): a(f"v_add_f32 v{r}, v{r}, v{tmp+k}")
def stats_fin(s, q, dbl, t):
    a(f"v_mul_f32 v{s}, {hx(1/512)}, v{s}\nv_mul_f32 v{t}, v{s}, v{s}")
    a(f"v_fma_f32 v{q}, v{q}, s60, -v{t}\nv_max_f32 v{q}, 0, v{q}")
    if dbl: a(f"v_mul_f32 v{q}, {hx(1+1e-5)}, v{q}\nv_add_f32 v{q}, {hx(1e-10)}, v{q}")
    else: a(f"v_add_f32 v{q}, {hx(1e-5)}, v{q}")
    a(f"v_rsq_f32 v{t}, v{q}")
    if dbl: a(f"v_mul_f32 v{t}, {hx(ALPHA)}, v{t}")
    a(f"v_mul_f32 v{q}, -v{s}, v{t}\nv_mov_b32 v{s}, v{t}")
def load_stats(base_s, dst):
    for mt in range(2): a(f"buffer_load_dwordx4 v[{dst+4*mt}:{dst+4*mt+3}], v{vL16}, {sWS}, {base_s} offen offset:{mt*1024} sc1")
def stats_from_partials(src, dbl, tmp):
    for mt in range(2):
        a(f"v_add_f32 v{ST+2*mt}, v{src+4*mt}, v{src+4*mt+2}\nv_add_f32 v{ST+2*mt+1}, v{src+4*mt+1}, v{src+4*mt+3}")
    xg_reduce([ST, ST + 1, ST + 2, ST + 3], tmp)
    for mt in range(2): stats_fin(ST + 2 * mt, ST + 2 * mt + 1, dbl, tmp + mt)
def prologue():
    a("s_load_dwordx16 s[64:79], s[0:1], 0\ns_load_dwordx4 s[80:83], s[0:1], 64\ns_load_dwordx2 s[84:85], s[0:1], 80")
    a(f"v_lshrrev_b32 v1, 6, v0\nv_and_b32 v2, 63, v0\nv_readfirstlane_b32 {W}, v1")
    if os.environ.get("PERM"): a("s_lshr_b32 s3, s2, 3\ns_and_b32 s3, s3, 7\ns_xor_b32 s2, s2, s3")
    a(f"s_mov_b32 {WG}, s2\ns_and_b32 {sT}, s2, 7\ns_lshr_b32 {sT2}, s2, 3\ns_and_b32 {J16}, {sT2}, 15\ns_lshr_b32 {sT2}, {sT2}, 4")
    a(f"s_lshl_b32 {SG}, {sT}, 1\ns_add_u32 {SG}, {SG}, {sT2}\ns_lshr_b32 {sT}, {J16}, 3\ns_lshl_b32 {RG}, {SG}, 1")
    a(f"s_add_u32 {RG}, {RG}, {sT}\ns_and_b32 {J8}, {J16}, 7\ns_mov_b32 s60, {hx(1/512)}")
    a(f"v_lshlrev_b32 v{vL16}, 4, v2\nv_lshrrev_b32 v{vU}, 3, v2")
    a(f"v_bfe_u32 v3, v2, 1, 2\nv_bfe_u32 v4, v2, 4, 2\nv_xor_b32 v3, v3, v4\nv_lshlrev_b32 v3, 5, v3")
    a(f"v_and_b32 v4, 1, v2\nv_lshl_add_u32 v{vCOL}, v4, 4, v3")
    a(f"v_lshrrev_b32 v3, 2, v2\nv_lshlrev_b32 v3, 7, v3\nv_bfe_u32 v4, v2, 3, 2\nv_lshl_add_u32 v3, v4, 5, v3")
    a(f"v_and_b32 v4, 3, v2\nv_lshl_add_u32 v{vT0}, v4, 3, v3")
    a(f"v_mov_b32 v3, 0x3f803f80")
    for k in range(4): a(f"v_accvgpr_write_b32 a{aONE+k}, v3")
    a("s_waitcnt lgkmcnt(0)")
    for b, p, n in [(8, 64, 2048*1024), (12, 66, 512*3072), (16, 68, 512*1024), (20, 72, 512*3584), (24, 76, 1792*1024),
                    (28, 84, 0x10000000), (32, 80, 2048*1024), (36, 74, 3584), (40, 78, 1024)]:
        a(f"s_mov_b32 s{b}, s{p}\ns_mov_b32 s{b+1}, s{p+1}\ns_mov_b32 s{b+2}, {n}\ns_mov_b32 s{b+3}, 0x20000")
    a("s_mov_b32 s44, s82\ns_mov_b32 s45, s83")

import os
TSON = int(os.environ.get("TSON", "0")); TSN = [0]; TSNAMES = []
def TSR(k): return ([*range(66, 88), 96, 97, 98, 99, 3, 4, 5, 6, 7])[k]
TSL = [0]
def ts(name):
    if not TSON or (os.environ.get("TSL") and name != "start" and int(os.environ["TSL"]) != TSL[0]): return
    if name[0] == "_" and not os.environ.get("TSL"): return
    k = TSN[0]; TSN[0] += 1; TSNAMES.append(name)
    a(f"{os.environ.get('TSI','s_memrealtime')} s[100:101]\ns_waitcnt lgkmcnt(0)\ns_mov_b32 s{TSR(k)}, s100")
def ts_dump():
    if not TSON: return
    a(f"s_cmp_lg_u32 {W}, {TSON-1}\ns_cbranch_scc1 Lend\nv_mov_b32 v0, 0")
    for k in range(TSN[0]): a(f"v_writelane_b32 v0, s{TSR(k)}, {k}")
    a(f"s_lshl_b32 {sT}, {WG}, 8\ns_add_u32 {sT}, {sT}, 0x3000000\nv_lshrrev_b32 v1, 2, v{vL16}\nbuffer_store_dword v0, v1, {sWS}, {sT} offen\ns_waitcnt vmcnt(0)")
    open("tsnames", "w").write(" ".join(TSNAMES))
```

```python
from gen1 import *
RINGV = [("v", BR + 4 * k) for k in range(8)]
RINGA = [("v", BR + 4 * k) for k in range(4)] + [("a", 240 + 4 * k) for k in range(4)]
def rr(s, o, n): return (v if s[0] == "v" else ag)(s[1] + o, n)
def mainloop(frags, D=6, ring=RINGV):
    n = len(frags)
    def rd(f):
        for l in frags[f].get("pr", []): a(l)
        ar, off = frags[f]["rd"]; b = ring[f % 8]
        return [tr(rr(b, 0, 2), ar, off), tr(rr(b, 2, 2), ar, off + 2048)]
    for f in range(min(D, n)):
        for l in rd(f): a(l)
    for f in range(n):
        for l in frags[f].get("pm", []): a(l)
        left = min(n - 1, f + D - 1) - f
        a(f"s_waitcnt lgkmcnt({2*left})")
        r = rd(f + D) if f + D < n else []
        ms = frags[f]["mf"](rr(ring[f % 8], 0, 4)); fl = list(frags[f].get("fl", [])); per = -(-len(fl) // len(ms))
        for m in ms:
            a(m)
            if r: a(r.pop(0))
            for _ in range(per):
                if fl: a(fl.pop(0))
        for l in r: a(l)
def spread(fr, lines, f0, f1):
    n = f1 - f0
    for k in range(n): fr[f0 + k].setdefault("fl", []).extend(lines[k * len(lines) // n:(k + 1) * len(lines) // n])
def a_loads(c, tag):
    o = [f"s_add_u32 s62, s62, 4096"] if c % 4 == 0 and c else []
    return o + [f"buffer_load_dwordx4 {v(Areg(mt,c),4)}, v{[vL16,ST+4][mt]}, {sWS}, s62 offen offset:{(c%4)*1024} sc1 ; @{tag}{c}" for mt in range(2)]
def Areg(mt, c): return (mt * 16 + c) * 4
def phi_pair(t, e, dst, kc):
    return [f"v_pk_fma_f32 {v(e,2)}, {v(t,2)}, {v(kc,2)}, {v(kc,2)} op_sel:[0,0,1] op_sel_hi:[1,0,1]",
            f"v_exp_f32_e64 v{e}, v{e} clamp", f"v_exp_f32_e64 v{e+1}, v{e+1} clamp",
            f"v_max_f32 v{t}, s61, v{t}", f"v_max_f32 v{t+1}, s61, v{t+1}",
            f"v_pk_add_f32 {v(t,2)}, {v(t,2)}, {v(e,2)}", f"v_cvt_pk_bf16_f32 v{dst}, v{t}, v{t+1}"]
def kv_items(pages): return [((p >> 1) * 32 * 3072 + 1024 + (p & 1) * 1024, p) for p in pages]
def q_items(cs): return [(c * 32 * 3072, 32 + c if c < 7 else c - 7) for c in cs]
def wq_base(): a(f"s_lshl_b32 {sBase}, {J8}, 7"); set_vo(3072)
def p1_start():
    XS = 23 * 4096
    ts("start")
    sk = a.lab("Z")
    a(f"s_cmp_ge_u32 {WG}, 64\ns_cbranch_scc1 {sk}\nv_lshlrev_b32 v1, 4, v0\ns_lshl_b32 {sT}, {WG}, 12")
    a("v_mov_b32 v4, 0\nv_mov_b32 v5, 0\nv_mov_b32 v6, 0\nv_mov_b32 v7, 0")
    a(f"buffer_store_dwordx4 v[4:7], v1, {sWS}, {sT} offen sc1\n{sk}:")
    a(f"v_lshrrev_b32 v16, 2, v{vL16}\ns_lshl_b32 {sT}, {J16}, 8\ns_lshl_b32 {sT2}, {J8}, 7")
    a(f"buffer_load_dword v{ST+4}, v16, {sB1}, {sT} offen\nbuffer_load_dword v{ST+6}, v16, {sB2}, {sT2} offen")
    for k in range(8): a(f"v_xor_b32 v{8+k}, {16*k}, v{vL16}")
    a(f"s_lshl_b32 {sT2}, {W}, 14\ns_lshl_b32 {sT}, {RG}, 16\ns_add_u32 {sT}, {sT}, {sT2}\ns_add_u32 {sT2}, {sT2}, {XS}")
    for q in range(4):
        a(f"s_add_u32 m0, {sT2}, {q*4096}\ns_add_u32 {sT3}, {sT}, {q*4096}")
        for j in range(4): a(f"buffer_load_dwordx4 v{8+(q*4+j)%8}, {sX}, {sT3} offen offset:{j*1024} lds")
    wq_base()
    dma_split(sWQ, sBase, kv_items(range(23)), [0, 1, 2, 3])
    sk = a.lab("XC")
    a(f"s_cmp_lg_u32 {W}, 0\ns_cbranch_scc1 {sk}\ns_getreg_b32 {sT}, hwreg(HW_REG_XCC_ID, 0, 3)\ns_lshl_b32 {sT}, {sT}, 3\ns_lshl_b64 s[62:63], 1, {sT}")
    a(f"s_mov_b64 exec, 1\nv_mov_b32 v16, s62\nv_mov_b32 v17, s63\ns_lshl_b32 {sT}, {SG}, 3\nv_mov_b32 v18, {sT}")
    a(f"global_atomic_add_x2 v18, v[16:17], {sDBG} offset:128 sc1\ns_mov_b64 exec, -1\n{sk}:")
    a(f"v_lshrrev_b32 v2, 4, v{vL16}\nv_bfe_u32 v3, v2, 5, 1\nv_and_b32 v4, 7, v2\nv_xor_b32 v3, v3, v4\nv_lshlrev_b32 v3, 4, v3")
    a(f"v_bfe_u32 v4, v2, 4, 1\nv_lshl_add_u32 v3, v4, 3, v3\nv_and_b32 v4, 15, v2\nv_lshl_add_u32 v3, v4, 10, v3")
    a(f"s_and_b32 {sT}, {W}, 1\ns_lshl_b32 {sT}, {sT}, 15\ns_add_u32 {sT}, {sT}, {XS}\nv_add_u32 v{TB}, {sT}, v3")
    a(f"s_lshl_b32 {sT}, {W}, 14\ns_lshl_b32 {sT2}, {J8}, 7\ns_add_u32 {sT}, {sT}, {sT2}\ns_add_u32 {sT}, {sT}, {XS}\nv_add_u32 v{TB+4}, {sT}, v3")
    for k in range(1, 4): a(f"v_xor_b32 v{TB+k}, {32*k}, v{TB}\nv_xor_b32 v{TB+4+k}, {32*k}, v{TB+4}")
    a(f"s_waitcnt vmcnt({20+NWARM})")
    a(f"v_lshrrev_b32 v2, 1, v{vL16}\nv_add_u32 v2, {TAB}, v2")
    for r, o in ((ST + 4, B1T - TAB), (ST + 6, B2T - TAB)):
        a(f"v_and_b32 v{r+1}, 0xffff0000, v{r}\nv_lshlrev_b32 v{r}, 16, v{r}")
        if o == B1T - TAB: a(f"v_mul_f32 v{r}, {hx(ALPHA)}, v{r}\nv_mul_f32 v{r+1}, {hx(ALPHA)}, v{r+1}")
        a(f"ds_write_b64 v2, {v(r,2)} offset:{o}")
    a(f"v_mov_b32 v4, 0\nds_write_b32 v2, v4")
    a("s_barrier"); ts("xland")
    sk = a.lab("Z")
    a(f"s_cmp_ge_u32 {WG}, 64\ns_cbranch_scc1 {sk}\ns_cmp_lg_u32 {W}, 0\ns_cbranch_scc1 {sk}")
    a(f"s_mov_b64 exec, 1\nv_mov_b32 v{ST}, 0\nv_mov_b32 v{ST+1}, 1\nglobal_atomic_add v{ST}, v{ST+1}, {sDBG} sc1\ns_mov_b64 exec, -1\n{sk}:")
    for c in range(16):
        for mt in range(2):
            for h in range(2): a(f"ds_read_b64 {v(Areg(mt,c)+2*h,2)}, v{TB+2*(c&1)+h} offset:{mt*16384+(c>>1)*128}")
    for k in range(4): a(f"ds_read_b64 {v(RES+2*k,2)}, v{TB+4+k}")
    a("s_waitcnt lgkmcnt(0)\ns_barrier")
    dma_split(sWQ, sBase, kv_items(range(23, 32)) + q_items(range(7)), [0, 1, 2, 3])
    touch_act()
    a(f"v_accvgpr_read_b32 v{ST+4}, a{aONE}")
    for k in range(4): a(f"v_mov_b32 v{ST+k}, 0")
    for r in range(64):
        for mt in range(2):
            a(f"v_dot2_f32_bf16 v{ST+2*mt}, v{mt*64+r}, v{ST+4}, v{ST+2*mt}\nv_dot2_f32_bf16 v{ST+2*mt+1}, v{mt*64+r}, v{mt*64+r}, v{ST+2*mt+1}")
    xg_reduce([ST, ST + 1, ST + 2, ST + 3], ST + 4)
    for mt in range(2): stats_fin(ST + 2 * mt, ST + 2 * mt + 1, False, ST + 4 + mt)
def p1(L):
    a(f"s_lshr_b32 {sT}, {W}, 1\ns_lshl_b32 {sT}, {sT}, 6\nv_xor_b32 v{TB}, {sT}, v{vT0}\nv_xor_b32 v{TB+1}, 32, v{TB}")
    for win in (1, 2):
        for hh in range(2): a(f"v_add_u32 v{TB+2*win+hh}, {win*65536}, v{TB+hh}")
    def rdp(page, hh): return (TB + 2 * (page >> 4) + hh, (page & 15) * 4096)
    PF = 5
    NS = ACC + 48
    def nstat():
        a(f"s_lshl_b32 {sT}, {W}, 8\ns_add_u32 {sT}, {sT}, {WST}\nv_bfe_u32 v{ST+5}, v{vL16}, 4, 4\nv_lshl_add_u32 v{ST+5}, v{ST+5}, 2, {sT}")
        for mt in range(2): a(f"ds_write_b32 v{ST+5}, v{ST+2*mt} offset:{mt*64}\nds_write_b32 v{ST+5}, v{ST+2*mt+1} offset:{128+mt*64}")
        a(f"v_lshrrev_b32 v{ST+6}, 8, v{vL16}\nv_lshl_add_u32 v{ST+6}, v{ST+6}, 4, {sT}")
        for k in range(4): a(f"ds_read_b128 {v(NS+4*k,4)}, v{ST+6} offset:{64*k}")
    if L == 1:
        for c in range(PF):
            for l in a_loads(c, "A"): a(l)
        load_stats("s63", ACC + 32)
        wq_base()
    else: nstat()
    fr = []
    for c in range(16):
        for t in range(4):
            def mf(b, c=c, t=t):
                o = [mfma(v(ACC + (mt * 4 + t) * 4, 4), v(Areg(mt, c), 4), b, v(ACC + (mt * 4 + t) * 4, 4) if c else "0") for mt in range(2)]
                if L == 0: o.append(mfma(v(ACC + 32 + t * 4, 4), ag(aONE, 4), b, v(ACC + 32 + t * 4, 4) if c else "0"))
                return o
            d = dict(rd=rdp(2 * c + (t >> 1), t & 1), mf=mf)
            if L == 0 and c == 0 and t == 0: d["pr"] = ["s_waitcnt vmcnt(18)", "s_barrier"]
            if L == 0 and c == 11 and t == 2: d["pr"] = ["s_waitcnt vmcnt(6)", "s_barrier"]
            if L == 1 and t == 0: d["pm"] = [f"VMWAIT A{c}"]
            fr.append(d)
        if L == 1 and c + PF < 16: spread(fr, a_loads(c + PF, "A"), 4 * c, 4 * c + 4)
    if L == 1:
        spread(fr, capture(lambda: (stats_from_partials(ACC + 32, False, ACC + 40), nstat())), 28, 44)
    a(f"s_mul_i32 s94, {W}, {32*3072}\ns_add_u32 s94, s94, {sBase}\ns_lshl_b32 s95, {W}, 12")
    a(f"s_mul_i32 s92, {W}, {8*3072}\ns_add_u32 s92, s92, {sBase}\ns_add_u32 s92, s92, {15*32*3072}\ns_lshl_b32 s93, {W}, 10\ns_add_u32 s93, s93, {8*4096}")
    qd = dma_wave(sWQ, "s94", "s95", [((7 + 4 * k) * 32 * 3072, 4 * k * 4096) for k in range(2)]) + ["s_mov_b32 m0, s93", "s_nop 0", f"buffer_load_dwordx4 v{VO}, {sWQ}, s92 offen lds"]
    ZR = ST + 4
    if L == 0: qd += [f"s_lshl_b32 {sT}, {SG}, 3", f"v_mov_b32 v{TB+6}, {sT}", f"v_mov_b32 v{TB+7}, 0", f"global_load_dword v{ZR}, v{TB+7}, {sDBG} sc1", f"global_load_dwordx2 {v(ZR+2,2)}, v{TB+6}, {sDBG} offset:128 sc1"]
    else: fr[44]["pm"].append("s_barrier")
    spread(fr, qd, 44, 62)
    ts("kv0")
    mainloop(fr)
    a("s_barrier"); ts("kv1")
    set_vo(1024)
    a(f"s_lshl_b32 s62, {W}, 17\ns_lshl_b32 {sT}, {J8}, 7\ns_add_u32 s62, s62, {sT}\ns_lshl_b32 s63, {W}, 14")
    wod = dma_wave(sWO, "s62", "s63", [(c * 32768, (12 + c) * 4096) for c in range(4)])
    KC, CS, PK, E = BR, BR + 4, BR + 8, BR + 24
    def kvepi():
        a(f"v_mov_b32 v{KC}, {hx(LOG2E)}\nv_mov_b32 v{KC+1}, {hx(-1e-6*LOG2E)}\ns_mov_b32 s61, {hx(1e-6)}\nv_mov_b32 v{KC+2}, s61\nv_mov_b32 v{KC+3}, 0")
        for t in range(4):
            if L == 0: a(f"v_accvgpr_write_b32 a{aCSKV+t}, v{ACC+32+4*t}\nv_mov_b32 v{CS+t}, v{ACC+32+4*t}")
            else: a(f"v_accvgpr_read_b32 v{CS+t}, a{aCSKV+t}")
        for t in range(4):
            ps = []
            for mt in range(2):
                for p in range(2):
                    ac = ACC + (mt * 4 + t) * 4 + 2 * p; s = t & 1; z = 0 if t < 2 else 1; e = E + 2 * (2 * mt + p); dst = PK + t * 4 + mt * 2 + p
                    ps.append([f"v_pk_fma_f32 {v(e,2)}, {v(NS+8+4*mt+2*p,2)}, {v(CS+(t&2),2)}, {v(KC+2,2)} op_sel:[0,{s},{z}] op_sel_hi:[1,{s},{z}]",
                               f"v_pk_fma_f32 {v(ac,2)}, {v(ac,2)}, {v(NS+4*mt+2*p,2)}, {v(e,2)}"] +
                              (phi_pair(ac, e, dst, KC) if t < 2 else [f"v_cvt_pk_bf16_f32 v{dst}, v{ac}, v{ac+1}"]))
            for z in zip(*ps):
                for l in z: a(l)
    wod = sprinkle(capture(kvepi), wod, 20)
    for hh in range(2):
        a(mfma(v(ACC + 8 * hh, 4), v(PK + 4 * hh, 4), v(PK + 8 + 4 * hh, 4), "0"))
        a(mfma(v(ACC + 8 * hh + 4, 4), v(PK + 4 * hh, 4), ag(aONE, 4), "0"))
    KS = 9 * 4096
    a(f"s_and_b32 {sT}, {W}, 1\ns_lshl_b32 {sT}, {sT}, 2\ns_and_b32 {sT2}, {W}, 2\ns_add_u32 {sT}, {sT}, {sT2}")
    a(f"s_lshl_b32 {sT2}, {sT}, 10\nv_add_u32 v{E}, {sT2}, v{vL16}\ns_lshl_b32 {sT2}, {sT}, 6\nv_lshrrev_b32 v{E+1}, 8, v{vL16}\nv_lshl_add_u32 v{E+1}, v{E+1}, 4, {sT2}")
    for hh in range(2):
        a(f"ds_write_b128 v{E}, {v(ACC+8*hh,4)} offset:{KS+hh*1024}\nds_write_b128 v{E+1}, {v(ACC+8*hh+4,4)} offset:{KS+8192+hh*64}")
    a(f"v_lshrrev_b32 v{E}, 2, v{vL16}\ns_lshl_b32 {sT}, {W}, 10\ns_add_u32 {sT}, {sT}, {KS}\nv_add_u32 v{E+1}, {sT}, v{E}")
    a(f"s_lshl_b32 {sT}, {W}, 6\ns_add_u32 {sT}, {sT}, {KS+8192}\nv_add_u32 v{E+2}, {sT}, v{E}")
    a(f"s_lshl_b32 {sT2}, {J8}, 2\ns_add_u32 {sT2}, {sT2}, {W}\ns_lshl_b32 s92, {sT2}, 10\ns_add_u32 s92, s92, {KVACC(L)}\ns_lshl_b32 s93, {sT2}, 6\ns_add_u32 s93, s93, {KVACC(L)+0x8000}")
    nw = 16 - sum(l.startswith("buffer") for l in wod)
    ts("_kvep"); a(f"s_waitcnt vmcnt({nw}) lgkmcnt(0)\ns_barrier"); ts("_kvb2")
    for k in range(4): a(f"ds_read2st64_b32 {v(ACC+2*k,2)}, v{E+1} offset0:{k} offset1:{k+16}")
    a(f"ds_read2st64_b32 {v(ACC+8,2)}, v{E+2} offset0:0 offset1:1")
    if L == 0:
        lp = a.lab("ZP"); dn = a.lab("ZP")
        a(f"s_mov_b32 {sCNT}, 100000\n{lp}:\nv_sad_u8 v{ZR}, v{ZR+2}, 0, v{ZR}\nv_sad_u8 v{ZR}, v{ZR+3}, 0, v{ZR}")
        a(f"v_cmp_ne_u32 vcc, 80, v{ZR}\ns_sub_u32 {sCNT}, {sCNT}, 1\ns_nop 3\ns_cbranch_vccz {dn}")
        a(f"global_load_dword v{ZR}, v{TB+7}, {sDBG} sc1\nglobal_load_dwordx2 {v(ZR+2,2)}, v{TB+6}, {sDBG} offset:128 sc1\ns_waitcnt vmcnt(0)")
        a(f"s_cmp_lg_u32 {sCNT}, 0\ns_cbranch_scc1 {lp}\n{dn}:")
        a(f"v_or_b32 v{ZR}, v{ZR+2}, v{ZR+3}\nv_and_b32 v{ZR}, 0x0f0f0f0f, v{ZR}\nv_readfirstlane_b32 {MIX}, v{ZR}")
    a("s_waitcnt lgkmcnt(0)")
    for k in range(5): a(f"v_add_f32 v{ACC+2*k}, v{ACC+2*k}, v{ACC+2*k+1}")
    for k in range(4): a(f"buffer_atomic_add_f32 v{ACC+2*k}, v{E}, {sWS}, s92 offen offset:{k*256} sc1")
    a(f"s_mov_b64 exec, 0xffff\nbuffer_atomic_add_f32 v{ACC+8}, v{E}, {sWS}, s93 offen sc1 ; @AT\ns_mov_b64 exec, -1")
    ts("_atom")
    QA, QC = ACC + 40, ACC + 56
    fr = []
    for c in range(16):
        for hh in range(2):
            def mf(b, c=c, hh=hh):
                o = [mfma(v(QA + (mt * 2 + hh) * 4, 4), b, v(Areg(mt, c), 4), v(QA + (mt * 2 + hh) * 4, 4) if c else "0") for mt in range(2)]
                if L == 0: o.append(mfma(v(QC + hh * 4, 4), b, ag(aONE, 4), v(QC + hh * 4, 4) if c else "0"))
                return o
            fr.append(dict(rd=rdp(32 + c if c < 7 else c - 7, hh), mf=mf))
    spread(fr, wod, 0, 28)
    mainloop(fr); ts("_qmm")
    sk = a.lab("KS")
    a(f"v_mov_b32 v{E}, {CNT}\nv_mov_b32 v{E+1}, 1\ns_lshl_b32 {sT}, {J8}, 5\ns_add_u32 {sT}, {sT}, {RG}\ns_lshl_b32 {sT}, {sT}, 7\ns_add_u32 {sT}, {sT}, {FL(L)+0x8000}")
    a(f"VMWAIT AT\ns_mov_b64 exec, 1\nds_add_rtn_u32 v{E+2}, v{E}, v{E+1}\ns_waitcnt lgkmcnt(0)\nv_cmp_ne_u32 vcc, {4*L+3}, v{E+2}\ns_nop 4\ns_cbranch_vccnz {sk}")
    a(f"buffer_store_dword v{E+1}, off, {sWS}, {sT} sc1\n{sk}:\ns_mov_b64 exec, -1"); ts("kvsig")
    a(f"v_mov_b32 v{KC}, {hx(LOG2E)}\nv_mov_b32 v{KC+1}, {hx(-1e-6*LOG2E)}\nv_mov_b32 v{KC+2}, s61")
    for k in range(8): a(f"v_accvgpr_write_b32 a{aCSQ+k}, v{QC+k}" if L == 0 else f"v_accvgpr_read_b32 v{QC+k}, a{aCSQ+k}")
    a(f"s_and_b32 {sT}, {W}, 1\ns_lshl_b32 {sT}, {sT}, 1\ns_lshl_b32 {sT2}, {RG}, 2\ns_add_u32 {sT}, {sT}, {sT2}\ns_lshl_b32 {sT}, {sT}, 14")
    a(f"s_lshl_b32 {sT2}, {J8}, 1\ns_lshr_b32 {sT3}, {W}, 1\ns_add_u32 {sT2}, {sT2}, {sT3}\ns_lshl_b32 {sT2}, {sT2}, 10\ns_add_u32 {sT}, {sT}, {sT2}\ns_add_u32 {sT}, {sT}, {PQ(L)}")
    for mt in range(2):
        for hh in range(2):
            for p in range(2):
                ac = QA + (mt * 2 + hh) * 4 + 2 * p
                a(f"v_pk_fma_f32 {v(E,2)}, {v(QC+4*hh+2*p,2)}, {v(ST+2*mt,2)}, {v(KC+2,2)} op_sel:[0,1,0] op_sel_hi:[1,1,0]")
                a(f"v_pk_fma_f32 {v(ac,2)}, {v(ac,2)}, {v(ST+2*mt,2)}, {v(E,2)} op_sel:[0,0,0] op_sel_hi:[1,0,1]")
                for l in phi_pair(ac, E + 2, PK + mt * 4 + hh * 2 + p, KC): a(l)
        a(f"buffer_store_dwordx4 {v(PK+mt*4,4)}, v{vL16}, {sWS}, {sT} offen{SC}")
        if mt == 0: a(f"s_add_u32 {sT}, {sT}, 16384")
NWARM = 0
def touch_act():
    a(f"v_lshlrev_b32 v{BR}, 3, v{vL16}\ns_lshl_b32 {sT}, {RG}, 3\ns_add_u32 {sT}, {sT}, {J8}")
    a(f"s_lshl_b32 {sT2}, {sT}, 2\ns_add_u32 {sT2}, {sT2}, {W}\ns_mul_i32 {sT2}, {sT2}, 7168\ns_add_u32 {sT2}, {sT2}, {HH(0)}")
    a(f"s_lshl_b32 {sT}, {sT}, 13\ns_lshl_b32 {sT3}, {W}, 22\ns_add_u32 {sT}, {sT}, {sT3}\ns_add_u32 {sT}, {sT}, {PQ(0)}")
    a(f"s_lshl_b32 {sT3}, {RG}, 12\ns_add_u32 {sT3}, {sT3}, {ST1(0)}\ns_cmp_ge_u32 {W}, 2\ns_cselect_b32 {sT}, {sT3}, {sT}")
    a(f"buffer_load_dword a240, v{BR}, {sWS}, {sT} offen\nbuffer_load_dword a241, v{BR}, {sWS}, {sT2} offen")
def warm_code():
    a("s_getpc_b64 s[86:87]\nLpc0:")
    a(f"s_lshr_b32 {sT}, s2, 3\ns_lshl_b32 {sT}, {sT}, 12\nv_lshlrev_b32 v1, 4, v0\nv_add_u32 v1, {sT}, v1")
    a("v_min_u32 v1, Lend-Lpc0-16, v1\nv_and_b32 v1, -4, v1\nglobal_load_dwordx4 v[20:23], v1, s[86:87]")
```

```python
from gen2 import *
def w1_items(pages): return [((p & 15) * 32 * 3584 + (p >> 4) * 128, p) for p in pages]
def rot_bases(stride_mt, base_imm, wmul):
    a(f"s_mul_i32 {sT}, {RG}, {4*stride_mt}\ns_mul_i32 {sT2}, {W}, {wmul}\ns_add_u32 {sT}, {sT}, {sT2}\ns_add_u32 {sT}, {sT}, {base_imm}")
    for k in range(4): a(f"s_add_u32 {sT2}, {W}, {k}\ns_and_b32 {sT2}, {sT2}, 3\ns_mul_i32 {sT2}, {sT2}, {stride_mt}\ns_add_u32 s{62+k}, {sT}, {sT2}")
def reduce_epi(L, ph):
    for k in range(1, 4):
        a(f"s_add_u32 {sT}, {W}, {k}\ns_and_b32 {sT}, {sT}, 3\ns_mul_i32 {sT}, {sT}, 6144\ns_add_u32 {sT}, {sT}, {SCR+(k-1)*2048}\nv_add_u32 v{TB+k}, {sT}, v{vL16}")
    a(f"s_mul_i32 {sT}, {W}, 6144\ns_add_u32 {sT}, {sT}, {SCR}\nv_add_u32 v{TB}, {sT}, v{vL16}\ns_mov_b32 s88, 0x3f80\ns_mov_b32 s89, 0x3f800000")
    if ph == 4:
        a(f"v_lshrrev_b32 v{TB+4}, 8, v{vL16}\nv_lshlrev_b32 v{TB+4}, 4, v{TB+4}\nv_add_u32 v{TB+4}, {B2T}, v{TB+4}")
        for nt in range(4): a(f"ds_read_b128 {v(BR+4*nt,4)}, v{TB+4} offset:{nt*64}")
    for k in range(1, 4):
        for h in range(2):
            b = ACC + k * 16 + h * 8
            for j in range(4): a(f"v_cvt_pk_bf16_f32 v{b+j}, v{b+2*j}, v{b+2*j+1}")
            a(f"ds_write_b128 v{TB+k}, {v(b,4)} offset:{h*1024}")
    def addp(r):
        for k in range(8): a(f"v_dot2_f32_bf16 v{ACC+2*k}, v{r+k}, s88, v{ACC+2*k}\nv_dot2_f32_bf16 v{ACC+2*k+1}, v{r+k}, s89, v{ACC+2*k+1}")
    a("s_waitcnt lgkmcnt(0)\ns_barrier"); ts("_rb")
    for k in range(6): a(f"ds_read_b128 {v(ACC+16+4*k,4)}, v{TB} offset:{k*1024}")
    if ph == 4:
        for k in range(8): a(f"v_pk_add_f32 {v(ACC+2*k,2)}, {v(ACC+2*k,2)}, {v(BR+2*k,2)}")
    addp(RES)
    for s in range(3):
        a(f"s_waitcnt lgkmcnt({4-2*s})"); addp(ACC + 16 + 8 * s)
    for k in range(8): a(f"v_cvt_pk_bf16_f32 v{RES+k}, v{ACC+2*k}, v{ACC+2*k+1}")
    a(f"s_lshl_b32 {sT}, {RG}, 2\ns_add_u32 {sT}, {sT}, {W}")
    if L == 1 and ph == 4:
        for k in (0, 1, 4, 5): a(f"v_permlane16_swap_b32 v{RES+k}, v{RES+k+2}")
        a(f"v_bfe_u32 v{TB}, v{vL16}, 4, 4\nv_lshlrev_b32 v{TB}, 10, v{TB}\nv_bfe_u32 v{TB+1}, v{vL16}, 8, 1\nv_lshl_add_u32 v{TB}, v{TB+1}, 5, v{TB}")
        a(f"v_bfe_u32 v{TB+1}, v{vL16}, 9, 1\nv_lshl_add_u32 v{TB}, v{TB+1}, 4, v{TB}")
        a(f"s_lshl_b32 {sT}, {sT}, 14\ns_lshl_b32 {sT2}, {J8}, 7\ns_add_u32 {sT}, {sT}, {sT2}")
        for k in range(2): a(f"buffer_store_dwordx4 {v(RES+4*k,4)}, v{TB}, {sOUT}, {sT} offen offset:{64*k}")
        return
    xb, sb = (X1(L), ST1(L)) if ph == 2 else (X2, ST2)
    a(f"s_lshl_b32 {sT2}, {sT}, 14\ns_lshl_b32 {sT3}, {J8}, 11\ns_add_u32 {sT2}, {sT2}, {sT3}\ns_add_u32 {sT2}, {sT2}, {xb}")
    for k in range(2): a(f"buffer_store_dwordx4 {v(RES+4*k,4)}, v{vL16}, {sWS}, {sT2} offen offset:{1024*k}{SC}")
    a(f"v_accvgpr_read_b32 v{BR+2}, a{aONE}\nv_mov_b32 v{BR}, 0\nv_mov_b32 v{BR+1}, 0")
    for k in range(8): a(f"v_dot2_f32_bf16 v{BR}, v{RES+k}, v{BR+2}, v{BR}\nv_dot2_f32_bf16 v{BR+1}, v{RES+k}, v{RES+k}, v{BR+1}")
    xg_reduce([BR, BR + 1], BR + 4)
    a(f"s_lshl_b32 {sT}, {sT}, 10\ns_lshr_b32 {sT2}, {J8}, 1\ns_lshl_b32 {sT2}, {sT2}, 8\ns_add_u32 {sT}, {sT}, {sT2}")
    a(f"s_and_b32 {sT2}, {J8}, 1\ns_lshl_b32 {sT2}, {sT2}, 3\ns_add_u32 {sT}, {sT}, {sT2}\ns_add_u32 {sT}, {sT}, {sb}")
    a(f"s_mov_b64 exec, 0xffff\nbuffer_store_dwordx2 {v(BR,2)}, v{vL16}, {sWS}, {sT} offen{SC}\ns_mov_b64 exec, -1")
def flag_addr(L, off, grp, idx, sh=7):
    a(f"s_lshl_b32 {sBase2}, {grp}, {sh}\ns_add_u32 {sBase2}, {sBase2}, {FL(L)+off}\ns_lshl_b32 {sT3}, {idx}, 2\ns_add_u32 {sT3}, {sT3}, {W}\ns_lshl_b32 {sT3}, {sT3}, 2\ns_add_u32 {sT3}, {sT3}, {sBase2}")
def p2(L):
    def wof(c, nt, o=0, n=4): return v(64 + (c * 4 + nt) * 4 + o, n) if c < 3 else ag(240 + nt * 4 + o, n)
    a(f"s_add_u32 {sT2}, s63, {12*4096}\nv_add_u32 v{TB}, {sT2}, v{vT0}")
    for j in range(1, 4): a(f"v_xor_b32 v{TB+j}, {32*j}, v{TB}")
    ts("_qep"); flag_addr(L, 0, RG, J8); poll_addr("pq")
    a("s_waitcnt vmcnt(0)"); signal(sT3); ts("pqsig")
    for c in range(4):
        for nt in range(4):
            for h in range(2): a(tr(wof(c, nt, 2 * h, 2), TB + nt, c * 4096 + h * 2048))
    rot_bases(16384, PQ(L), 4096); set_vo(3584)
    KV, ZA, EP = BR, BR + 16, TB
    NUMS = [(228, 236, 240), (112, 116, 120)]
    a(f"v_bfe_u32 v{TB}, v{vL16}, 4, 1\nv_cmp_eq_u32_e64 s[90:91], 0, v{TB}\nv_lshlrev_b32 v{TB}, 6, v{TB}\nv_lshrrev_b32 v{TB+1}, 8, v{vL16}\nv_lshl_add_u32 v{TB}, v{TB+1}, 4, v{TB}")
    a(f"s_lshl_b32 s92, {W}, 13\ns_add_u32 s88, s92, {FL(L)+0x8000}\ns_add_u32 s92, s92, {KVACC(L)}\ns_add_u32 s93, s92, 4096\ns_lshl_b32 s94, {W}, 9\ns_add_u32 s94, s94, {KVACC(L)+0x8000}")
    a(f"s_mul_i32 {sBase}, {W}, {32*3584}\ns_lshl_b32 {sT}, {J16}, 8\ns_add_u32 {sBase}, {sBase}, {sT}\ns_lshl_b32 s95, {W}, 12")
    a(f"s_lshl_b32 {sT}, {W}, 5\ns_add_u32 {sBase2}, {sBase2}, {sT}\ns_waitcnt lgkmcnt(0)\ns_barrier")
    poll(sBase2); ts("pqok")
    for c in range(4):
        for mt in range(4): a(f"buffer_load_dwordx4 {v((mt*4+c)*4,4)}, v{vL16}, {sWS}, s{62+mt} offen offset:{c*1024} sc1")
    poll_addr("kv"); poll("s88"); ts("kvok")
    for c in range(4):
        a(f"buffer_load_dwordx4 {v(ACC+32+4*c,4)}, v{TB}, {sWS}, s94 offen offset:{c*128} sc1")
        for h in (2 * c, 2 * c + 1): a(f"buffer_load_dwordx4 {v(ACC+4*h,4)}, v{vL16}, {sWS}, s{92+h//4} offen offset:{(h%4)*1024} sc1 ; @K{h}")
    dm = dma_wave(sW1, sBase, "s95", [(k * 4 * 32 * 3584 + cb * 128, (cb * 16 + 4 * k) * 4096) for k in range(4) for cb in range(2)])
    NE = 12
    for l in dm[:NE * 3 // 2]: a(l)
    dm = dm[NE * 3 // 2:]
    for k in range(4): a(f"v_mov_b32 v{EP+k}, s61")
    for c in range(4):
        a(f"VMWAIT K{2*c+1}")
        for k in range(4 * c, 4 * c + 4): a(f"v_cvt_pk_bf16_f32 v{KV+k}, v{ACC+2*k}, v{ACC+2*k+1}")
        for p in range(2):
            t = ACC + 48 + 2 * c + p
            a(f"v_cvt_pk_bf16_f32 v{t}, v{ACC+32+4*c+2*p}, v{ACC+33+4*c+2*p}")
            a(f"v_cndmask_b32_e64 v{ZA+4*c+p}, 0, v{t}, s[90:91]\nv_cndmask_b32_e64 v{ZA+4*c+2+p}, v{t}, 0, s[90:91]")
    ts("_kvld")
    items = [(mt, c) for c in range(4) for mt in range(4)]
    def s1(k):
        mt, c = items[k]; p = (mt * 4 + c) * 4; N = NUMS[k & 1]
        return [mfma(v(N[2], 4), v(ZA + 4 * c, 4), v(p, 4), v(EP, 4)),
                mfma(v(N[0], 4), v(KV + 4 * c, 2), v(p, 2), "0", True), mfma(v(N[1], 4), v(KV + 4 * c + 2, 2), v(p + 2, 2), "0", True)]
    def s2(k):
        mt, c = items[k]; p = (mt * 4 + c) * 4; N = NUMS[k & 1]
        o = [f"v_rcp_f32 v{N[2]}, v{N[2]}", f"v_rcp_f32 v{N[2]+1}, v{N[2]+1}"]
        for j in range(8): o.append(f"v_mul_f32 v{N[j>>2]+(j&3)}, v{N[j>>2]+(j&3)}, v{N[2]+(j>>2)}")
        for j in range(4): o.append(f"v_cvt_pk_bf16_f32 v{p+j}, v{N[j>>1]+2*(j&1)}, v{N[j>>1]+2*(j&1)+1}")
        return o
    def s3(k):
        mt, c = items[k]; p = (mt * 4 + c) * 4
        return [mfma(v(ACC + (mt * 4 + nt) * 4, 4), wof(c, nt), v(p, 4), v(ACC + (mt * 4 + nt) * 4, 4) if c else "0") for nt in range(4)]
    for k in range(-1, 17):
        m = (s1(k + 1) if k + 1 < 16 else []) + (s3(k - 1) if k >= 1 else [])
        f = (s2(k) if 0 <= k < 16 else []) + (dm[2 * k:2 * k + 2] if k >= 0 else [])
        for l in m:
            a(l)
            for _ in range(2):
                if f: a(f.pop(0))
        for l in f: a(l)
    ts("p2mm"); reduce_epi(L, 2)
    ts("_st"); flag_addr(L, 0x1000, RG, J8)
    a("s_waitcnt vmcnt(0)"); signal(sT3); ts("x1sig")
    a("s_barrier")
def gelu_pair(ac, mt, cs, b1, e, dst):
    return [f"v_pk_fma_f32 {v(e,2)}, {v(cs,2)}, {v(ST+2*mt,2)}, {v(b1,2)} op_sel:[0,1,0] op_sel_hi:[1,1,1]",
            f"v_pk_fma_f32 {v(ac,2)}, {v(ac,2)}, {v(ST+2*mt,2)}, {v(e,2)} op_sel:[0,0,0] op_sel_hi:[1,0,1]",
            f"v_pk_fma_f32 {v(e,2)}, {v(ac,2)}, {v(ac,2)}, s[90:91]",
            f"v_pk_mul_f32 {v(e,2)}, {v(e,2)}, {v(ac,2)}",
            f"v_exp_f32_e64 v{e}, -v{e}", f"v_exp_f32_e64 v{e+1}, -v{e+1}",
            f"v_pk_fma_f32 {v(e,2)}, {v(e,2)}, s[92:93], s[92:93]",
            f"v_rcp_f32_e64 v{e}, v{e}", f"v_rcp_f32_e64 v{e+1}, v{e+1}",
            f"v_pk_mul_f32 {v(ac,2)}, {v(ac,2)}, {v(e,2)}", f"v_cvt_pk_bf16_f32 v{dst}, v{ac}, v{ac+1}"]
def w2_dma(s0, n):
    a(f"s_mul_i32 {sBase}, {W}, {14*32768}\ns_lshl_b32 {sT}, {J8}, 7\ns_add_u32 {sBase}, {sBase}, {sT}\ns_mul_i32 {sT2}, {W}, {9*4096}")
    for k in range(n):
        a(f"s_add_u32 m0, {sT2}, {k*4096}\ns_add_u32 {sT}, {sBase}, {(s0+k)*32768}")
        for j in range(4): a(f"buffer_load_dwordx4 v{VO+j}, {sW2}, {sT} offen offset:{j*1024} lds")
def w2_tr(s0, n):
    a(f"s_mul_i32 {sT2}, {W}, {9*4096}\nv_add_u32 v{TB}, {sT2}, v{vT0}")
    for j in range(1, 4): a(f"v_xor_b32 v{TB+j}, {32*j}, v{TB}")
    for k in range(n):
        for nt in range(4):
            for h in range(2): a(tr(ag(((s0 + k) * 4 + nt) * 4 + 2 * h, 2), TB + nt, k * 4096 + h * 2048))
    a("s_waitcnt lgkmcnt(0)")
def a_bases(mt0s, xb, sb):
    a(f"s_lshl_b32 s63, {mt0s}, 10\ns_add_u32 s63, s63, {sb}\ns_lshl_b32 s62, {mt0s}, 14\ns_add_u32 s62, s62, {xb}\nv_add_u32 v{ST+4}, 16384, v{vL16}")
def p3(L):
    if L == 0:
        a(f"s_lshr_b32 {sT}, {W}, 1\ns_lshl_b32 {sT}, {sT}, 16\ns_and_b32 {sT2}, {W}, 1\ns_lshl_b32 {sT2}, {sT2}, 6")
        a(f"v_xor_b32 v{TB}, {sT2}, v{vT0}\nv_add_u32 v{TB}, {sT}, v{TB}\nv_xor_b32 v{TB+1}, 32, v{TB}")
        mainloop([dict(rd=(TB + k, c * 4096), mf=lambda b, c=c, k=k: [mfma(v(ACC + 4 * k, 4), b, ag(aONE, 4), v(ACC + 4 * k, 4) if c else "0")]) for c in range(16) for k in range(2)])
        a(f"s_lshl_b32 {sT}, {W}, 7\ns_add_u32 {sT}, {sT}, {CS1}\nv_lshrrev_b32 v{TB}, 8, v{vL16}\nv_lshl_add_u32 v{TB}, v{TB}, 4, {sT}")
        for k in range(2): a(f"ds_write_b128 v{TB}, {v(ACC+4*k,4)} offset:{64*k}")
        a("s_waitcnt lgkmcnt(0)")
    a(f"s_lshl_b32 {sT}, {W}, 1\ns_lshl_b32 {sT2}, {SG}, 3\ns_add_u32 {sT3}, {sT}, {sT2}")
    a_bases(sT3, X1(L), ST1(L))
    a(f"s_mul_i32 {sT3}, {sT3}, {56*1024}\ns_lshl_b32 {sT2}, {J16}, 12\ns_add_u32 {sT3}, {sT3}, {sT2}\ns_add_u32 s64, {sT3}, {HH(L)}\ns_add_u32 s65, s64, {56*1024}")
    a(f"s_mov_b32 s90, {hx(ALPHA*ALPHA/0.044715)}\ns_mov_b32 s91, s90\ns_mov_b32 s92, {hx(ALPHA)}\ns_mov_b32 s93, s92")
    a(f"v_lshrrev_b32 v{VO}, 8, v{vL16}\nv_lshlrev_b32 v{VO}, 4, v{VO}\nv_add_u32 v{VO}, {CS1}, v{VO}")
    for j in range(4): a(f"v_xor_b32 v{TB+j}, {32*j}, v{vT0}")
    idle = a.lab("ID")
    a(f"s_cmp_ge_u32 {J16}, 14\ns_cbranch_scc1 {idle}")
    a(f"s_lshl_b32 {sT}, {SG}, 1\ns_lshr_b32 {sT2}, {W}, 1\ns_add_u32 {sT}, {sT}, {sT2}\ns_lshl_b32 {sT}, {sT}, 7\ns_and_b32 {sT2}, {W}, 1\ns_lshl_b32 {sT2}, {sT2}, 3\ns_add_u32 {sT}, {sT}, {sT2}\ns_add_u32 {sT}, {sT}, {FL(L)+0x1000}")
    poll_addr(3); poll(sT); ts("x1ok")
    PF = 3; CB = BR + 16
    for c in range(PF):
        for l in a_loads(c, "X"): a(l)
    load_stats("s63", CB)
    for j in range(4): a(f"v_add_u32 v{TB+4+j}, 65536, v{TB+j}")
    fr = []
    for c in range(16):
        for nt in range(8):
            d = dict(rd=(TB + nt, c * 4096), mf=lambda b, c=c, nt=nt: [mfma(v(ACC + (mt * 8 + nt) * 4, 4), b, v(Areg(mt, c), 4), v(ACC + (mt * 8 + nt) * 4, 4) if c else "0") for mt in range(2)])
            if nt == 0: d["pm"] = [f"VMWAIT X{c}"]
            fr.append(d)
    spread(fr, [l for c in range(PF, 16) for l in a_loads(c, "X")], 0, 72)
    spread(fr, capture(lambda: stats_from_partials(CB, True, CB + 8)), 72, 112)
    if L == 0: fr[112]["pm"].append("s_barrier")
    def csb(q, dst): return [f"ds_read_b128 {v(dst+4*k,4)}, v{VO} offset:{(k>>1)*512+(2*q+(k&1))*64}" for k in range(4)]
    CSR = [0, 16, 64, 80]
    spread(fr, [l for q in range(4) for l in csb(q, CSR[q])], 112, 128)
    mainloop(fr, ring=RINGA); ts("p3mm")
    a("s_waitcnt lgkmcnt(0)\n.p2align 3")
    for q in range(4):
        for mt in range(2):
            b = ACC + (mt * 8 + 2 * q) * 4
            for z in zip(*[gelu_pair(b + 2 * k, mt, CSR[q] + 2 * k, CSR[q] + 8 + 2 * k, CB + 2 * k, b + k) for k in range(4)]):
                for l in z: a(l)
            a(f"buffer_store_dwordx4 {v(b,4)}, v{vL16}, {sWS}, s{64+mt} offen offset:{q*1024}{SC}")
    flag_addr(L, 0x2000, SG, J16, 8)
    a("s_waitcnt vmcnt(0)"); signal(sT3); ts("hsig")
    a(f"{idle}:")
    if L == 0: a("s_barrier")
    if L == 0:
        set_vo(1024); w2_dma(0, 9); a("s_waitcnt vmcnt(0)"); w2_tr(0, 9); w2_dma(9, 5)
def p4(L):
    rot_bases(56 * 1024, HH(L), 14 * 1024)
    a(f"s_mul_i32 {sT}, {W}, 14\ns_lshr_b32 {sT}, {sT}, 2\ns_lshl_b32 {sT}, {sT}, 4\ns_and_b32 {sT2}, {RG}, 1\ns_lshl_b32 {sT2}, {sT2}, 3\ns_add_u32 {sT}, {sT}, {sT2}")
    a(f"s_lshl_b32 {sT2}, {SG}, 8\ns_add_u32 {sT}, {sT}, {sT2}\ns_add_u32 {sT}, {sT}, {FL(L)+0x2000}")
    poll_addr(2); poll(sT); ts("hok")
    def ld(s):
        o = []
        if s % 4 == 0 and s: o += [f"s_add_u32 s{62+mt}, s{62+mt}, 4096" for mt in range(4)]
        return o + [f"buffer_load_dwordx4 {v(((s%8)*4+mt)*4,4)}, v{vL16}, {sWS}, s{62+mt} offen offset:{(s%4)*1024} sc1 ; @H{s}_{mt}" for mt in range(4)]
    PF = 3
    if os.environ.get("REP4") and L == 1:
        for rep in range(2):
            for s in range(14):
                for l in ld(s): a(l)
                if s >= 7: a("s_waitcnt vmcnt(28)")
            a("s_waitcnt vmcnt(0)"); rot_bases(56 * 1024, HH(L), 14 * 1024); ts("rep")
    for s in range(PF):
        for l in ld(s): a(l)
    if L == 0:
        a(f"s_waitcnt vmcnt({4*PF})"); w2_tr(9, 5); a("s_barrier"); wq_base()
        a(f"s_lshr_b32 {sT}, {W}, 1\ns_mul_i32 {sT}, {sT}, {32*3072}\ns_add_u32 s94, {sBase}, {sT}\ns_and_b32 {sT}, {W}, 1\ns_lshl_b32 {sT}, {sT}, 10\ns_add_u32 s94, s94, {sT}\ns_lshl_b32 s95, {W}, 12")
    lds = [l for s in range(PF, 14) for l in ld(s)]
    if L == 0: lds += dma_wave(sWQ, "s94", "s95", [(k * 2 * 32 * 3072 + 1024, k * 4 * 4096) for k in range(8)])
    for s in range(14):
        for mt in range(4):
            a(f"VMWAIT H{s}_{mt}")
            for nt in range(4):
                a(mfma(v(ACC + (mt * 4 + nt) * 4, 4), ag((s * 4 + nt) * 4, 4), v(((s % 8) * 4 + mt) * 4, 4), v(ACC + (mt * 4 + nt) * 4, 4) if s else "0"))
                if nt in ((1, 3) if s < 3 or s > 7 else (1,)):
                    while lds:
                        l = lds.pop(0); a(l)
                        if l.startswith("buffer"): break
    for l in lds: a(l)
    ts("p4mm")
    reduce_epi(L, 4)
    if L == 0:
        flag_addr(L, 0x3000, RG, J8)
        a("s_waitcnt vmcnt(0)"); signal(sT3); ts("x2sig"); a("s_barrier")
        dma_split(sWQ, sBase, q_items(range(7)), [0, 1, 2, 3])
        a(f"s_and_b32 {sT}, {W}, 1\ns_lshl_b32 {sT}, {sT}, 1\ns_lshl_b32 {sT2}, {RG}, 2\ns_add_u32 {sT3}, {sT}, {sT2}")
        a_bases(sT3, X2, ST2)
        a(f"s_lshl_b32 {sT}, {sT}, 2\ns_add_u32 {sT}, {sT}, {sBase2}")
        poll_addr(3); poll(sT); ts("x2ok")
```

```python
from gen3 import *
import gen2
def build_asm(stop=99):
    a.L.clear(); a("s_cmp_ge_u32 s2, 256\ns_cbranch_scc1 Lend"); warm_code(); prologue(); p1_start()
    n = 0
    for L in range(2):
        TSL[0] = L
        for f in (p1, p2, p3, p4):
            if n < stop: f(L)
            n += 1
    a("s_waitcnt vmcnt(0)"); ts("end"); ts_dump()
    a("Lend:\ns_endpgm")
    body, nn = fix_hazards(resolve_vm(a.L))
    ref = open(f"cdna_kernels/{NAME}.s.ref").read().split("\n")
    hdr = [l for l in ref[:ref.index(f"{NAME}_kernel:") + 1]]
    hdr = [("; @launch grid=(256,1,1) block=(256,1,1) lds=163840" if l.startswith("; @launch") else l) for l in hdr]
    tail = "\n".join(ref[ref.index('.section .rodata,"a"'):]).replace("next_free_vgpr 256", "next_free_vgpr 512")
    return "\n".join(hdr) + "\n" + "\n".join(body) + "\n" + tail
if __name__ == "__main__":
    out = sys.argv[1] if len(sys.argv) > 1 else f"cdna_kernels/{NAME}.s"
    open(out, "w").write(build_asm(int(sys.argv[2]) if len(sys.argv) > 2 else 99))
```

```python
import sys, struct, os
RU = 0
SC = ""
MIX = "s46"
sys.path.insert(0, "dev")
from asmlib import *
NAME = "interleave_layers__linear_attn_block__mixer_channel_mlp__prompt"
def f2u(x): return struct.unpack("<I", struct.pack("<f", x))[0]
def hx(x): return "0x%08x" % f2u(x)
LOG2E = 1.4426950408889634
sX, sWQ, sWO, sW1, sW2, sWS, sOUT, sB1, sB2 = [sr(8 + 4 * k, 4) for k in range(9)]
sDBG = "s[44:45]"
W, RG, J8, SG, J16, WG = "s48", "s49", "s50", "s51", "s52", "s53"
sT, sT2, sT3, sCNT, sBase, sBase2 = "s54", "s55", "s56", "s57", "s58", "s59"
vL16, vT0, vU, vCOL, RES = 255, 254, 253, 252, 244
VO, TB, ST, ACC, BR = 232, 224, 236, 128, 192
aCSKV, aCSQ, aONE = 224, 228, 236
def FL(L): return L * 0x10000
def KVACC(L): return 0x20000 + L * 0x8800
def ST1(L): return 0x40000 + RU * L * 0x20000
ST2 = 0x40000
def PQ(L): return 0x100000 + RU * L * 0x200000
def X1(L): return 0x500000 + RU * L * 0x200000
X2 = 0x500000
def HH(L): return 0xB00000 + RU * L * 0x700000
TAB = 39 * 4096
CNT = TAB
ALPHA = (2 * 0.7978845608028654 * LOG2E * 0.044715) ** (1 / 3)
CS1, B1T, B2T, WST = TAB + 1024, TAB + 1536, TAB + 2048, TAB + 2560
SCR = 32 * 4096
a = A()
def mfma(d, s0, s1, c, k16=False):
    return f"v_mfma_f32_16x16x{'16' if k16 else '32'}_bf16 {d}, {s0}, {s1}, {c}"
def per_wave(fn, waves=(0, 1, 2, 3)):
    end = a.lab("PW")
    for w in waves:
        nx = a.lab("PW")
        a(f"s_cmp_lg_u32 {W}, {w}\ns_cbranch_scc1 {nx}")
        fn(w)
        a(f"s_branch {end}\n{nx}:")
    a(f"{end}:")
def set_vo(stride):
    a(f"v_mul_u32_u24 v{VO}, {stride}, v{vU}\nv_add_u32 v{VO}, v{VO}, v{vCOL}")
    for j in range(1, 4): a(f"v_add_u32 v{VO+j}, {j*(8*stride-1024)}, v{VO}")
SKIP = [0]
def dma_page(srd, base, imm, page):
    if SKIP[0]: return
    a(f"s_mov_b32 m0, {page*4096}\ns_add_u32 {sT}, {base}, {imm}")
    for j in range(4): a(f"buffer_load_dwordx4 v{VO+j}, {srd}, {sT} offen offset:{j*1024} lds")
def dma_split(srd, base, items, waves):
    per_wave(lambda w: [dma_page(srd, base, i, p) for i, p in items[waves.index(w)::len(waves)]], waves)
def trb(j, win): return TB + (j & 3) + 4 * win
def tr(dst, areg, off): return f"ds_read_b64_tr_b16 {dst}, v{areg} offset:{off}"
def signal(soff):
    e = a.lab("SG"); m = a.lab("SG")
    a(f"s_mov_b64 exec, 1\nv_mov_b32 v{ST+7}, 1\ns_cmp_lg_u32 {MIX}, 0\ns_cbranch_scc1 {m}")
    a(f"buffer_store_dword v{ST+7}, off, {sWS}, {soff}\ns_branch {e}")
    a(f"{m}:\nbuffer_wbl2 sc1\ns_waitcnt vmcnt(0)\nbuffer_store_dword v{ST+7}, off, {sWS}, {soff} sc1\n{e}:\ns_mov_b64 exec, -1")
def poll_addr(kind):
    t = TB + 7
    if kind == "pq": a(f"v_bfe_u32 v{t}, v{vL16}, 4, 3\nv_lshlrev_b32 v{t}, 2, v{t}")
    elif kind == "kv": a(f"v_lshlrev_b32 v{t}, 3, v{vL16}")
    else: a(f"v_bfe_u32 v{t}, v{vL16}, 5, {kind}\nv_lshlrev_b32 v{t}, 4, v{t}\nv_bfe_u32 v{t-1}, v{vL16}, 4, 1\nv_lshl_add_u32 v{t}, v{t-1}, 2, v{t}")
def poll(soff, extra=()):
    lp = a.lab("PL"); ok = a.lab("PL")
    if extra:
        a(f"buffer_load_dword v{TB+6}, v{TB+7}, {sWS}, {soff} offen sc1\ns_waitcnt vmcnt(0)\nv_cmp_ne_u32 vcc, 1, v{TB+6}\ns_nop 4\ns_cbranch_vccz {ok}")
        for l in extra: a(l)
    a(f"s_mov_b32 {sCNT}, 100000\n{lp}:\nbuffer_load_dword v{TB+6}, v{TB+7}, {sWS}, {soff} offen sc1\ns_waitcnt vmcnt(0)")
    a(f"v_cmp_ne_u32 vcc, 1, v{TB+6}\ns_sub_u32 {sCNT}, {sCNT}, 1\ns_nop 3\ns_cbranch_vccz {ok}")
    a(f"s_cmp_lg_u32 {sCNT}, 0\ns_cbranch_scc1 {lp}\n{ok}:")
def capture(fn):
    sv = a.L; a.L = []; fn(); r = a.L; a.L = sv; return r
def sprinkle(main, fill, every):
    fill = list(fill)
    for k, l in enumerate(main):
        a(l)
        if k % every == every - 1:
            while fill:
                f = fill.pop(0); a(f)
                if f.startswith("buffer"): break
    return fill
def dma_lines(srd, base, imm, page):
    return [f"s_mov_b32 m0, {page*4096}", f"s_add_u32 {sT}, {base}, {imm}"] + [f"buffer_load_dwordx4 v{VO+j}, {srd}, {sT} offen offset:{j*1024} lds" for j in range(4)]
def dma_wave(srd, gbase, lbase, items):
    o = []
    for gi, li in items:
        o += [f"s_add_u32 m0, {lbase}, {li}", f"s_add_u32 s47, {gbase}, {gi}"] + [f"buffer_load_dwordx4 v{VO+j}, {srd}, s47 offen offset:{j*1024} lds" for j in range(4)]
    return o
def xg_reduce(regs, tmp):
    for op in ("v_permlane16_swap_b32", "v_permlane32_swap_b32"):
        for k, r in enumerate(regs): a(f"v_mov_b32 v{tmp+k}, v{r}")
        for k, r in enumerate(regs): a(f"{op} v{tmp+k}, v{r}")
        for k, r in enumerate(regs): a(f"v_add_f32 v{r}, v{r}, v{tmp+k}")
def stats_fin(s, q, dbl, t):
    a(f"v_mul_f32 v{s}, {hx(1/512)}, v{s}\nv_mul_f32 v{t}, v{s}, v{s}")
    a(f"v_fma_f32 v{q}, v{q}, s60, -v{t}\nv_max_f32 v{q}, 0, v{q}")
    if dbl: a(f"v_mul_f32 v{q}, {hx(1+1e-5)}, v{q}\nv_add_f32 v{q}, {hx(1e-10)}, v{q}")
    else: a(f"v_add_f32 v{q}, {hx(1e-5)}, v{q}")
    a(f"v_rsq_f32 v{t}, v{q}")
    if dbl: a(f"v_mul_f32 v{t}, {hx(ALPHA)}, v{t}")
    a(f"v_mul_f32 v{q}, -v{s}, v{t}\nv_mov_b32 v{s}, v{t}")
def load_stats(base_s, dst):
    for mt in range(2): a(f"buffer_load_dwordx4 v[{dst+4*mt}:{dst+4*mt+3}], v{vL16}, {sWS}, {base_s} offen offset:{mt*1024} sc1")
def stats_from_partials(src, dbl, tmp):
    for mt in range(2):
        a(f"v_add_f32 v{ST+2*mt}, v{src+4*mt}, v{src+4*mt+2}\nv_add_f32 v{ST+2*mt+1}, v{src+4*mt+1}, v{src+4*mt+3}")
    xg_reduce([ST, ST + 1, ST + 2, ST + 3], tmp)
    for mt in range(2): stats_fin(ST + 2 * mt, ST + 2 * mt + 1, dbl, tmp + mt)
def prologue():
    a("s_load_dwordx16 s[64:79], s[0:1], 0\ns_load_dwordx4 s[80:83], s[0:1], 64\ns_load_dwordx2 s[84:85], s[0:1], 80")
    a(f"v_lshrrev_b32 v1, 6, v0\nv_and_b32 v2, 63, v0\nv_readfirstlane_b32 {W}, v1")
    if os.environ.get("PERM"): a("s_lshr_b32 s3, s2, 3\ns_and_b32 s3, s3, 7\ns_xor_b32 s2, s2, s3")
    a(f"s_mov_b32 {WG}, s2\ns_and_b32 {sT}, s2, 7\ns_lshr_b32 {sT2}, s2, 3\ns_and_b32 {J16}, {sT2}, 15\ns_lshr_b32 {sT2}, {sT2}, 4")
    a(f"s_lshl_b32 {SG}, {sT}, 1\ns_add_u32 {SG}, {SG}, {sT2}\ns_lshr_b32 {sT}, {J16}, 3\ns_lshl_b32 {RG}, {SG}, 1")
    a(f"s_add_u32 {RG}, {RG}, {sT}\ns_and_b32 {J8}, {J16}, 7\ns_mov_b32 s60, {hx(1/512)}")
    a(f"v_lshlrev_b32 v{vL16}, 4, v2\nv_lshrrev_b32 v{vU}, 3, v2")
    a(f"v_bfe_u32 v3, v2, 1, 2\nv_bfe_u32 v4, v2, 4, 2\nv_xor_b32 v3, v3, v4\nv_lshlrev_b32 v3, 5, v3")
    a(f"v_and_b32 v4, 1, v2\nv_lshl_add_u32 v{vCOL}, v4, 4, v3")
    a(f"v_lshrrev_b32 v3, 2, v2\nv_lshlrev_b32 v3, 7, v3\nv_bfe_u32 v4, v2, 3, 2\nv_lshl_add_u32 v3, v4, 5, v3")
    a(f"v_and_b32 v4, 3, v2\nv_lshl_add_u32 v{vT0}, v4, 3, v3")
    a(f"v_mov_b32 v3, 0x3f803f80")
    for k in range(4): a(f"v_accvgpr_write_b32 a{aONE+k}, v3")
    a("s_waitcnt lgkmcnt(0)")
    for b, p, n in [(8, 64, 2048*1024), (12, 66, 512*3072), (16, 68, 512*1024), (20, 72, 512*3584), (24, 76, 1792*1024),
                    (28, 84, 0x10000000), (32, 80, 2048*1024), (36, 74, 3584), (40, 78, 1024)]:
        a(f"s_mov_b32 s{b}, s{p}\ns_mov_b32 s{b+1}, s{p+1}\ns_mov_b32 s{b+2}, {n}\ns_mov_b32 s{b+3}, 0x20000")
    a("s_mov_b32 s44, s82\ns_mov_b32 s45, s83")

import os
TSON = int(os.environ.get("TSON", "0")); TSN = [0]; TSNAMES = []
def TSR(k): return ([*range(66, 88), 96, 97, 98, 99, 3, 4, 5, 6, 7])[k]
TSL = [0]
def ts(name):
    if not TSON or (os.environ.get("TSL") and name != "start" and int(os.environ["TSL"]) != TSL[0]): return
    if name[0] == "_" and not os.environ.get("TSL"): return
    k = TSN[0]; TSN[0] += 1; TSNAMES.append(name)
    a(f"{os.environ.get('TSI','s_memrealtime')} s[100:101]\ns_waitcnt lgkmcnt(0)\ns_mov_b32 s{TSR(k)}, s100")
def ts_dump():
    if not TSON: return
    a(f"s_cmp_lg_u32 {W}, {TSON-1}\ns_cbranch_scc1 Lend\nv_mov_b32 v0, 0")
    for k in range(TSN[0]): a(f"v_writelane_b32 v0, s{TSR(k)}, {k}")
    a(f"s_lshl_b32 {sT}, {WG}, 8\ns_add_u32 {sT}, {sT}, 0x3000000\nv_lshrrev_b32 v1, 2, v{vL16}\nbuffer_store_dword v0, v1, {sWS}, {sT} offen\ns_waitcnt vmcnt(0)")
    open("tsnames", "w").write(" ".join(TSNAMES))
```

```python
from gen1 import *
RINGV = [("v", BR + 4 * k) for k in range(8)]
RINGA = [("v", BR + 4 * k) for k in range(4)] + [("a", 240 + 4 * k) for k in range(4)]
def rr(s, o, n): return (v if s[0] == "v" else ag)(s[1] + o, n)
def mainloop(frags, D=6, ring=RINGV):
    n = len(frags)
    def rd(f):
        for l in frags[f].get("pr", []): a(l)
        ar, off = frags[f]["rd"]; b = ring[f % 8]
        return [tr(rr(b, 0, 2), ar, off), tr(rr(b, 2, 2), ar, off + 2048)]
    for f in range(min(D, n)):
        for l in rd(f): a(l)
    for f in range(n):
        for l in frags[f].get("pm", []): a(l)
        left = min(n - 1, f + D - 1) - f
        a(f"s_waitcnt lgkmcnt({2*left})")
        r = rd(f + D) if f + D < n else []
        ms = frags[f]["mf"](rr(ring[f % 8], 0, 4)); fl = list(frags[f].get("fl", [])); per = -(-len(fl) // len(ms))
        for m in ms:
            a(m)
            if r: a(r.pop(0))
            for _ in range(per):
                if fl: a(fl.pop(0))
        for l in r: a(l)
def spread(fr, lines, f0, f1):
    n = f1 - f0
    for k in range(n): fr[f0 + k].setdefault("fl", []).extend(lines[k * len(lines) // n:(k + 1) * len(lines) // n])
def a_loads(c, tag):
    o = [f"s_add_u32 s62, s62, 4096"] if c % 4 == 0 and c else []
    return o + [f"buffer_load_dwordx4 {v(Areg(mt,c),4)}, v{[vL16,ST+4][mt]}, {sWS}, s62 offen offset:{(c%4)*1024} sc1 ; @{tag}{c}" for mt in range(2)]
def Areg(mt, c): return (mt * 16 + c) * 4
def phi_pair(t, e, dst, kc):
    return [f"v_pk_fma_f32 {v(e,2)}, {v(t,2)}, {v(kc,2)}, {v(kc,2)} op_sel:[0,0,1] op_sel_hi:[1,0,1]",
            f"v_exp_f32_e64 v{e}, v{e} clamp", f"v_exp_f32_e64 v{e+1}, v{e+1} clamp",
            f"v_max_f32 v{t}, s61, v{t}", f"v_max_f32 v{t+1}, s61, v{t+1}",
            f"v_pk_add_f32 {v(t,2)}, {v(t,2)}, {v(e,2)}", f"v_cvt_pk_bf16_f32 v{dst}, v{t}, v{t+1}"]
def kv_items(pages): return [((p >> 1) * 32 * 3072 + 1024 + (p & 1) * 1024, p) for p in pages]
def q_items(cs): return [(c * 32 * 3072, 32 + c if c < 7 else c - 7) for c in cs]
def wq_base(): a(f"s_lshl_b32 {sBase}, {J8}, 7"); set_vo(3072)
def p1_start():
    XS = 23 * 4096
    ts("start")
    a(f"v_lshlrev_b32 v{TV}, 3, v{vL16}")
    for l in touch(TW.get("st", "")): a(l)
    sk = a.lab("Z")
    a(f"s_cmp_ge_u32 {WG}, 64\ns_cbranch_scc1 {sk}\nv_lshlrev_b32 v1, 4, v0\ns_lshl_b32 {sT}, {WG}, 12")
    a("v_mov_b32 v4, 0\nv_mov_b32 v5, 0\nv_mov_b32 v6, 0\nv_mov_b32 v7, 0")
    a(f"buffer_store_dwordx4 v[4:7], v1, {sWS}, {sT} offen sc1\n{sk}:")
    a(f"v_lshrrev_b32 v16, 2, v{vL16}\ns_lshl_b32 {sT}, {J16}, 8\ns_lshl_b32 {sT2}, {J8}, 7")
    a(f"buffer_load_dword v{ST+4}, v16, {sB1}, {sT} offen\nbuffer_load_dword v{ST+6}, v16, {sB2}, {sT2} offen")
    for k in range(8): a(f"v_xor_b32 v{8+k}, {16*k}, v{vL16}")
    a(f"s_lshl_b32 {sT2}, {W}, 14\ns_lshl_b32 {sT}, {RG}, 16\ns_add_u32 {sT}, {sT}, {sT2}\ns_add_u32 {sT2}, {sT2}, {XS}")
    for q in range(4):
        a(f"s_add_u32 m0, {sT2}, {q*4096}\ns_add_u32 {sT3}, {sT}, {q*4096}")
        for j in range(4): a(f"buffer_load_dwordx4 v{8+(q*4+j)%8}, {sX}, {sT3} offen offset:{j*1024} lds")
    wq_base()
    dma_split(sWQ, sBase, kv_items(range(23)), [0, 1, 2, 3])
    sk = a.lab("XC")
    a(f"s_cmp_lg_u32 {W}, 0\ns_cbranch_scc1 {sk}\ns_getreg_b32 {sT}, hwreg(HW_REG_XCC_ID, 0, 3)\ns_lshl_b32 {sT}, {sT}, 3\ns_lshl_b64 s[62:63], 1, {sT}")
    a(f"s_mov_b64 exec, 1\nv_mov_b32 v16, s62\nv_mov_b32 v17, s63\ns_lshl_b32 {sT}, {SG}, 3\nv_mov_b32 v18, {sT}")
    a(f"global_atomic_add_x2 v18, v[16:17], {sDBG} offset:128 sc1\ns_mov_b64 exec, -1\n{sk}:")
    a(f"v_lshrrev_b32 v2, 4, v{vL16}\nv_bfe_u32 v3, v2, 5, 1\nv_and_b32 v4, 7, v2\nv_xor_b32 v3, v3, v4\nv_lshlrev_b32 v3, 4, v3")
    a(f"v_bfe_u32 v4, v2, 4, 1\nv_lshl_add_u32 v3, v4, 3, v3\nv_and_b32 v4, 15, v2\nv_lshl_add_u32 v3, v4, 10, v3")
    a(f"s_and_b32 {sT}, {W}, 1\ns_lshl_b32 {sT}, {sT}, 15\ns_add_u32 {sT}, {sT}, {XS}\nv_add_u32 v{TB}, {sT}, v3")
    a(f"s_lshl_b32 {sT}, {W}, 14\ns_lshl_b32 {sT2}, {J8}, 7\ns_add_u32 {sT}, {sT}, {sT2}\ns_add_u32 {sT}, {sT}, {XS}\nv_add_u32 v{TB+4}, {sT}, v3")
    for k in range(1, 4): a(f"v_xor_b32 v{TB+k}, {32*k}, v{TB}\nv_xor_b32 v{TB+4+k}, {32*k}, v{TB+4}")
    a(f"s_waitcnt vmcnt({20+NWARM})")
    a(f"v_lshrrev_b32 v2, 1, v{vL16}\nv_add_u32 v2, {TAB}, v2")
    for r, o in ((ST + 4, B1T - TAB), (ST + 6, B2T - TAB)):
        a(f"v_and_b32 v{r+1}, 0xffff0000, v{r}\nv_lshlrev_b32 v{r}, 16, v{r}")
        if o == B1T - TAB: a(f"v_mul_f32 v{r}, {hx(ALPHA)}, v{r}\nv_mul_f32 v{r+1}, {hx(ALPHA)}, v{r+1}")
        a(f"ds_write_b64 v2, {v(r,2)} offset:{o}")
    a(f"v_mov_b32 v4, 0\nds_write_b32 v2, v4")
    a("s_barrier"); ts("xland")
    sk = a.lab("Z")
    a(f"s_cmp_ge_u32 {WG}, 64\ns_cbranch_scc1 {sk}\ns_cmp_lg_u32 {W}, 0\ns_cbranch_scc1 {sk}")
    a(f"s_mov_b64 exec, 1\nv_mov_b32 v{ST}, 0\nv_mov_b32 v{ST+1}, 1\nglobal_atomic_add v{ST}, v{ST+1}, {sDBG} sc1\ns_mov_b64 exec, -1\n{sk}:")
    for c in range(16):
        for mt in range(2):
            for h in range(2): a(f"ds_read_b64 {v(Areg(mt,c)+2*h,2)}, v{TB+2*(c&1)+h} offset:{mt*16384+(c>>1)*128}")
    for k in range(4): a(f"ds_read_b64 {v(RES+2*k,2)}, v{TB+4+k}")
    a("s_waitcnt lgkmcnt(0)\ns_barrier")
    dma_split(sWQ, sBase, kv_items(range(23, 32)) + q_items(range(7)), [0, 1, 2, 3])
    a(f"v_lshlrev_b32 v{TV}, 3, v{vL16}")
    for l in touch(TW.get("b2", "")): a(l)
    NTW[0] = nvm(touch(TW.get("b2", "")))
    a(f"v_accvgpr_read_b32 v{ST+4}, a{aONE}")
    for k in range(4): a(f"v_mov_b32 v{ST+k}, 0")
    for r in range(64):
        for mt in range(2):
            a(f"v_dot2_f32_bf16 v{ST+2*mt}, v{mt*64+r}, v{ST+4}, v{ST+2*mt}\nv_dot2_f32_bf16 v{ST+2*mt+1}, v{mt*64+r}, v{mt*64+r}, v{ST+2*mt+1}")
    xg_reduce([ST, ST + 1, ST + 2, ST + 3], ST + 4)
    for mt in range(2): stats_fin(ST + 2 * mt, ST + 2 * mt + 1, False, ST + 4 + mt)
def p1(L):
    a(f"s_lshr_b32 {sT}, {W}, 1\ns_lshl_b32 {sT}, {sT}, 6\nv_xor_b32 v{TB}, {sT}, v{vT0}\nv_xor_b32 v{TB+1}, 32, v{TB}")
    for win in (1, 2):
        for hh in range(2): a(f"v_add_u32 v{TB+2*win+hh}, {win*65536}, v{TB+hh}")
    def rdp(page, hh): return (TB + 2 * (page >> 4) + hh, (page & 15) * 4096)
    PF = 5
    NS = ACC + 48
    def nstat():
        a(f"s_lshl_b32 {sT}, {W}, 8\ns_add_u32 {sT}, {sT}, {WST}\nv_bfe_u32 v{ST+5}, v{vL16}, 4, 4\nv_lshl_add_u32 v{ST+5}, v{ST+5}, 2, {sT}")
        for mt in range(2): a(f"ds_write_b32 v{ST+5}, v{ST+2*mt} offset:{mt*64}\nds_write_b32 v{ST+5}, v{ST+2*mt+1} offset:{128+mt*64}")
        a(f"v_lshrrev_b32 v{ST+6}, 8, v{vL16}\nv_lshl_add_u32 v{ST+6}, v{ST+6}, 4, {sT}")
        for k in range(4): a(f"ds_read_b128 {v(NS+4*k,4)}, v{ST+6} offset:{64*k}")
    if L == 1:
        for c in range(PF):
            for l in a_loads(c, "A"): a(l)
        load_stats("s63", ACC + 32)
        wq_base()
    else: nstat()
    fr = []
    for c in range(16):
        for t in range(4):
            def mf(b, c=c, t=t):
                o = [mfma(v(ACC + (mt * 4 + t) * 4, 4), v(Areg(mt, c), 4), b, v(ACC + (mt * 4 + t) * 4, 4) if c else "0") for mt in range(2)]
                if L == 0: o.append(mfma(v(ACC + 32 + t * 4, 4), ag(aONE, 4), b, v(ACC + 32 + t * 4, 4) if c else "0"))
                return o
            d = dict(rd=rdp(2 * c + (t >> 1), t & 1), mf=mf)
            if L == 0 and c == 0 and t == 0: d["pr"] = [f"s_waitcnt vmcnt({16+NTW[0]})", "s_barrier"]
            if L == 0 and c == 11 and t == 2: d["pr"] = [f"s_waitcnt vmcnt({4+NTW[0]+nvm(tch(L, "f0", 0))})", "s_barrier"]
            if L == 1 and t == 0: d["pm"] = [f"VMWAIT A{c}"]
            fr.append(d)
        if L == 1 and c + PF < 16: spread(fr, a_loads(c + PF, "A"), 4 * c, 4 * c + 4)
    if L == 1:
        spread(fr, capture(lambda: (stats_from_partials(ACC + 32, False, ACC + 40), nstat())), 28, 44)
    a(f"s_mul_i32 s94, {W}, {32*3072}\ns_add_u32 s94, s94, {sBase}\ns_lshl_b32 s95, {W}, 12")
    a(f"s_mul_i32 s92, {W}, {8*3072}\ns_add_u32 s92, s92, {sBase}\ns_add_u32 s92, s92, {15*32*3072}\ns_lshl_b32 s93, {W}, 10\ns_add_u32 s93, s93, {8*4096}")
    qd = dma_wave(sWQ, "s94", "s95", [((7 + 4 * k) * 32 * 3072, 4 * k * 4096) for k in range(2)]) + ["s_mov_b32 m0, s93", "s_nop 0", f"buffer_load_dwordx4 v{VO}, {sWQ}, s92 offen lds"]
    ZR = ST + 4
    if L == 0: qd += [f"s_lshl_b32 {sT}, {SG}, 3", f"v_mov_b32 v{TB+6}, {sT}", f"v_mov_b32 v{TB+7}, 0", f"global_load_dword v{ZR}, v{TB+7}, {sDBG} sc1", f"global_load_dwordx2 {v(ZR+2,2)}, v{TB+6}, {sDBG} offset:128 sc1"]
    else: fr[44]["pm"].append("s_barrier")
    spread(fr, qd, 44, 60)
    spread(fr, tch(L, "f61", ST + 5), 60, 64); spread(fr, tch(L, "f0", ST + 5), 0, 8)
    ts("kv0")
    mainloop(fr)
    a("s_barrier"); ts("kv1")
    set_vo(1024)
    a(f"s_lshl_b32 s62, {W}, 17\ns_lshl_b32 {sT}, {J8}, 7\ns_add_u32 s62, s62, {sT}\ns_lshl_b32 s63, {W}, 14")
    wod = dma_wave(sWO, "s62", "s63", [(c * 32768, (12 + c) * 4096) for c in range(4)])
    KC, CS, PK, E = BR, BR + 4, BR + 8, BR + 24
    def kvepi():
        a(f"v_mov_b32 v{KC}, {hx(LOG2E)}\nv_mov_b32 v{KC+1}, {hx(-1e-6*LOG2E)}\ns_mov_b32 s61, {hx(1e-6)}\nv_mov_b32 v{KC+2}, s61\nv_mov_b32 v{KC+3}, 0")
        for t in range(4):
            if L == 0: a(f"v_accvgpr_write_b32 a{aCSKV+t}, v{ACC+32+4*t}\nv_mov_b32 v{CS+t}, v{ACC+32+4*t}")
            else: a(f"v_accvgpr_read_b32 v{CS+t}, a{aCSKV+t}")
        for t in range(4):
            ps = []
            for mt in range(2):
                for p in range(2):
                    ac = ACC + (mt * 4 + t) * 4 + 2 * p; s = t & 1; z = 0 if t < 2 else 1; e = E + 2 * (2 * mt + p); dst = PK + t * 4 + mt * 2 + p
                    ps.append([f"v_pk_fma_f32 {v(e,2)}, {v(NS+8+4*mt+2*p,2)}, {v(CS+(t&2),2)}, {v(KC+2,2)} op_sel:[0,{s},{z}] op_sel_hi:[1,{s},{z}]",
                               f"v_pk_fma_f32 {v(ac,2)}, {v(ac,2)}, {v(NS+4*mt+2*p,2)}, {v(e,2)}"] +
                              (phi_pair(ac, e, dst, KC) if t < 2 else [f"v_cvt_pk_bf16_f32 v{dst}, v{ac}, v{ac+1}"]))
            for z in zip(*ps):
                for l in z: a(l)
    wod = sprinkle(capture(kvepi), wod, 20)
    for hh in range(2):
        a(mfma(v(ACC + 8 * hh, 4), v(PK + 4 * hh, 4), v(PK + 8 + 4 * hh, 4), "0"))
        a(mfma(v(ACC + 8 * hh + 4, 4), v(PK + 4 * hh, 4), ag(aONE, 4), "0"))
    KS = 9 * 4096
    a(f"s_and_b32 {sT}, {W}, 1\ns_lshl_b32 {sT}, {sT}, 2\ns_and_b32 {sT2}, {W}, 2\ns_add_u32 {sT}, {sT}, {sT2}")
    a(f"s_lshl_b32 {sT2}, {sT}, 10\nv_add_u32 v{E}, {sT2}, v{vL16}\ns_lshl_b32 {sT2}, {sT}, 6\nv_lshrrev_b32 v{E+1}, 8, v{vL16}\nv_lshl_add_u32 v{E+1}, v{E+1}, 4, {sT2}")
    for hh in range(2):
        a(f"ds_write_b128 v{E}, {v(ACC+8*hh,4)} offset:{KS+hh*1024}\nds_write_b128 v{E+1}, {v(ACC+8*hh+4,4)} offset:{KS+8192+hh*64}")
    a(f"v_lshrrev_b32 v{E}, 2, v{vL16}\ns_lshl_b32 {sT}, {W}, 10\ns_add_u32 {sT}, {sT}, {KS}\nv_add_u32 v{E+1}, {sT}, v{E}")
    a(f"s_lshl_b32 {sT}, {W}, 6\ns_add_u32 {sT}, {sT}, {KS+8192}\nv_add_u32 v{E+2}, {sT}, v{E}")
    a(f"s_lshl_b32 {sT2}, {J8}, 2\ns_add_u32 {sT2}, {sT2}, {W}\ns_lshl_b32 s92, {sT2}, 10\ns_add_u32 s92, s92, {KVACC(L)}\ns_lshl_b32 s93, {sT2}, 6\ns_add_u32 s93, s93, {KVACC(L)+0x8000}")
    nw = 16 - sum(l.startswith("buffer") for l in wod) + nvm(tch(L, "f61", 0))
    ts("_kvep"); a(f"s_waitcnt vmcnt({nw}) lgkmcnt(0)\ns_barrier"); ts("_kvb2")
    for k in range(4): a(f"ds_read2st64_b32 {v(ACC+2*k,2)}, v{E+1} offset0:{k} offset1:{k+16}")
    a(f"ds_read2st64_b32 {v(ACC+8,2)}, v{E+2} offset0:0 offset1:1")
    if L == 0:
        lp = a.lab("ZP"); dn = a.lab("ZP")
        a(f"s_mov_b32 {sCNT}, 100000\n{lp}:\nv_sad_u8 v{ZR}, v{ZR+2}, 0, v{ZR}\nv_sad_u8 v{ZR}, v{ZR+3}, 0, v{ZR}")
        a(f"v_cmp_ne_u32 vcc, 80, v{ZR}\ns_sub_u32 {sCNT}, {sCNT}, 1\ns_nop 3\ns_cbranch_vccz {dn}")
        a(f"global_load_dword v{ZR}, v{TB+7}, {sDBG} sc1\nglobal_load_dwordx2 {v(ZR+2,2)}, v{TB+6}, {sDBG} offset:128 sc1\ns_waitcnt vmcnt(0)")
        a(f"s_cmp_lg_u32 {sCNT}, 0\ns_cbranch_scc1 {lp}\n{dn}:")
        a(f"v_or_b32 v{ZR}, v{ZR+2}, v{ZR+3}\nv_and_b32 v{ZR}, 0x0f0f0f0f, v{ZR}\nv_readfirstlane_b32 {MIX}, v{ZR}")
    a("s_waitcnt lgkmcnt(0)")
    for k in range(5): a(f"v_add_f32 v{ACC+2*k}, v{ACC+2*k}, v{ACC+2*k+1}")
    for k in range(4): a(f"buffer_atomic_add_f32 v{ACC+2*k}, v{E}, {sWS}, s92 offen offset:{k*256} sc1")
    a(f"s_mov_b64 exec, 0xffff\nbuffer_atomic_add_f32 v{ACC+8}, v{E}, {sWS}, s93 offen sc1 ; @AT\ns_mov_b64 exec, -1")
    ts("_atom")
    QA, QC = ACC + 40, ACC + 56
    fr = []
    for c in range(16):
        for hh in range(2):
            def mf(b, c=c, hh=hh):
                o = [mfma(v(QA + (mt * 2 + hh) * 4, 4), b, v(Areg(mt, c), 4), v(QA + (mt * 2 + hh) * 4, 4) if c else "0") for mt in range(2)]
                if L == 0: o.append(mfma(v(QC + hh * 4, 4), b, ag(aONE, 4), v(QC + hh * 4, 4) if c else "0"))
                return o
            fr.append(dict(rd=rdp(32 + c if c < 7 else c - 7, hh), mf=mf))
    spread(fr, wod, 0, 28)
    mainloop(fr); ts("_qmm")
    sk = a.lab("KS")
    a(f"v_mov_b32 v{E}, {CNT}\nv_mov_b32 v{E+1}, 1\ns_lshl_b32 {sT}, {J8}, 5\ns_add_u32 {sT}, {sT}, {RG}\ns_lshl_b32 {sT}, {sT}, 7\ns_add_u32 {sT}, {sT}, {FL(L)+0x8000}")
    a(f"VMWAIT AT\ns_mov_b64 exec, 1\nds_add_rtn_u32 v{E+2}, v{E}, v{E+1}\ns_waitcnt lgkmcnt(0)\nv_cmp_ne_u32 vcc, {4*L+3}, v{E+2}\ns_nop 4\ns_cbranch_vccnz {sk}")
    a(f"buffer_store_dword v{E+1}, off, {sWS}, {sT} sc1\n{sk}:\ns_mov_b64 exec, -1"); ts("kvsig")
    a(f"v_mov_b32 v{KC}, {hx(LOG2E)}\nv_mov_b32 v{KC+1}, {hx(-1e-6*LOG2E)}\nv_mov_b32 v{KC+2}, s61")
    for k in range(8): a(f"v_accvgpr_write_b32 a{aCSQ+k}, v{QC+k}" if L == 0 else f"v_accvgpr_read_b32 v{QC+k}, a{aCSQ+k}")
    a(f"s_and_b32 {sT}, {W}, 1\ns_lshl_b32 {sT}, {sT}, 1\ns_lshl_b32 {sT2}, {RG}, 2\ns_add_u32 {sT}, {sT}, {sT2}\ns_lshl_b32 {sT}, {sT}, 14")
    a(f"s_lshl_b32 {sT2}, {J8}, 1\ns_lshr_b32 {sT3}, {W}, 1\ns_add_u32 {sT2}, {sT2}, {sT3}\ns_lshl_b32 {sT2}, {sT2}, 10\ns_add_u32 {sT}, {sT}, {sT2}\ns_add_u32 {sT}, {sT}, {PQ(L)}")
    for mt in range(2):
        for hh in range(2):
            for p in range(2):
                ac = QA + (mt * 2 + hh) * 4 + 2 * p
                a(f"v_pk_fma_f32 {v(E,2)}, {v(QC+4*hh+2*p,2)}, {v(ST+2*mt,2)}, {v(KC+2,2)} op_sel:[0,1,0] op_sel_hi:[1,1,0]")
                a(f"v_pk_fma_f32 {v(ac,2)}, {v(ac,2)}, {v(ST+2*mt,2)}, {v(E,2)} op_sel:[0,0,0] op_sel_hi:[1,0,1]")
                for l in phi_pair(ac, E + 2, PK + mt * 4 + hh * 2 + p, KC): a(l)
        a(f"buffer_store_dwordx4 {v(PK+mt*4,4)}, v{vL16}, {sWS}, {sT} offen{SC}")
        if mt == 0: a(f"s_add_u32 {sT}, {sT}, 16384")
NWARM = 0
NTW = [0]
TV = 231
def touch(which):
    o = []
    for ch in which:
        if ch == "a":
            o += f"s_lshl_b32 {sT}, {RG}, 3\ns_add_u32 {sT}, {sT}, {J8}\ns_lshl_b32 {sT}, {sT}, 13\ns_lshl_b32 {sT3}, {W}, 22\ns_add_u32 {sT}, {sT}, {sT3}\ns_add_u32 {sT}, {sT}, {PQ(0)}".split("\n")
            o += f"s_lshl_b32 {sT3}, {RG}, 12\ns_add_u32 {sT3}, {sT3}, {ST1(0)}\ns_cmp_ge_u32 {W}, 2\ns_cselect_b32 {sT}, {sT3}, {sT}".split("\n")
            o += [f"buffer_load_dword a0, v{TV}, {sWS}, {sT} offen"]
        elif ch == "h":
            o += f"s_lshl_b32 {sT}, {RG}, 3\ns_add_u32 {sT}, {sT}, {J8}\ns_lshl_b32 {sT}, {sT}, 2\ns_add_u32 {sT}, {sT}, {W}\ns_mul_i32 {sT}, {sT}, 7168\ns_add_u32 {sT}, {sT}, {HH(0)}".split("\n")
            o += [f"buffer_load_dword a1, v{TV}, {sWS}, {sT} offen"]
        elif ch == "x":
            o += f"s_lshl_b32 {sT}, {RG}, 3\ns_add_u32 {sT}, {sT}, {J8}\ns_lshl_b32 {sT}, {sT}, 2\ns_add_u32 {sT}, {sT}, {W}\ns_lshl_b32 {sT}, {sT}, 11".split("\n")
            o += ["s_mov_b64 exec, 0xffff", f"buffer_load_dword a7, v{TV}, {sX}, {sT} offen", "s_mov_b64 exec, -1"]
        elif ch in "kq":
            o += f"s_lshr_b32 {sT}, {WG}, 3\ns_lshl_b32 {sT}, {sT}, 2\ns_add_u32 {sT}, {sT}, {W}\ns_mul_i32 {sT}, {sT}, {4*3072}".split("\n")
            if ch == "k": o += [f"v_lshrrev_b32 v{BR}, 8, v{vL16}", f"v_lshl_add_u32 v{BR}, v{BR}, 10, v{TV},"[:-1], f"buffer_load_dword a8, v{BR}, {sWQ}, {sT} offen offset:1024"]
            else: o += [f"v_lshrrev_b32 v{BR}, 7, v{vL16}", f"v_lshl_add_u32 v{BR}, v{BR}, 11, v{TV},"[:-1], "s_mov_b64 exec, 0xffffffff", f"buffer_load_dword a9, v{BR}, {sWQ}, {sT} offen", "s_mov_b64 exec, -1"]
        else:
            o += f"s_lshr_b32 {sT}, {WG}, 3\ns_lshl_b32 {sT}, {sT}, 2\ns_add_u32 {sT}, {sT}, {W}".split("\n")
            if ch == "o": o += [f"s_lshl_b32 {sT}, {sT}, 12", "s_mov_b64 exec, 0xffffffff", f"buffer_load_dword a2, v{TV}, {sWO}, {sT} offen", "s_mov_b64 exec, -1"]
            else:
                srd, d = ((sW1, 3), (sW2, 5))[ch == "2"]
                o += [f"s_mul_i32 {sT}, {sT}, {112*128}", f"buffer_load_dword a{d}, v{TV}, {srd}, {sT} offen", f"s_add_u32 {sT}, {sT}, {48*128}", f"buffer_load_dword a{d+1}, v{TV}, {srd}, {sT} offen"]
    return o
def nvm(ls): return sum(l.startswith("buffer") for l in ls)
TW = dict(x.split("=") for x in os.environ.get("TW", "st=xk,b2=q,f0=ao,pq=1,p2e=2").split(","))
def tch(L, key, reg):
    if L or not TW.get(key): return []
    return [f"v_lshlrev_b32 v{reg}, 3, v{vL16}"] + [l.replace(f"v{TV},", f"v{reg},").replace("s54", "s47").replace("s56", "s89") for l in touch(TW[key])]
def warm_code():
    a("s_getpc_b64 s[86:87]\nLpc0:")
    a(f"s_lshr_b32 {sT}, s2, 3\ns_lshl_b32 {sT}, {sT}, 12\nv_lshlrev_b32 v1, 4, v0\nv_add_u32 v1, {sT}, v1")
    a("v_min_u32 v1, Lend-Lpc0-16, v1\nv_and_b32 v1, -4, v1\nglobal_load_dwordx4 v[20:23], v1, s[86:87]")
```

```python
from gen2 import *
def w1_items(pages): return [((p & 15) * 32 * 3584 + (p >> 4) * 128, p) for p in pages]
def rot_bases(stride_mt, base_imm, wmul):
    a(f"s_mul_i32 {sT}, {RG}, {4*stride_mt}\ns_mul_i32 {sT2}, {W}, {wmul}\ns_add_u32 {sT}, {sT}, {sT2}\ns_add_u32 {sT}, {sT}, {base_imm}")
    for k in range(4): a(f"s_add_u32 {sT2}, {W}, {k}\ns_and_b32 {sT2}, {sT2}, 3\ns_mul_i32 {sT2}, {sT2}, {stride_mt}\ns_add_u32 s{62+k}, {sT}, {sT2}")
def reduce_epi(L, ph):
    for k in range(1, 4):
        a(f"s_add_u32 {sT}, {W}, {k}\ns_and_b32 {sT}, {sT}, 3\ns_mul_i32 {sT}, {sT}, 6144\ns_add_u32 {sT}, {sT}, {SCR+(k-1)*2048}\nv_add_u32 v{TB+k}, {sT}, v{vL16}")
    a(f"s_mul_i32 {sT}, {W}, 6144\ns_add_u32 {sT}, {sT}, {SCR}\nv_add_u32 v{TB}, {sT}, v{vL16}\ns_mov_b32 s88, 0x3f80\ns_mov_b32 s89, 0x3f800000")
    if ph == 4:
        a(f"v_lshrrev_b32 v{TB+4}, 8, v{vL16}\nv_lshlrev_b32 v{TB+4}, 4, v{TB+4}\nv_add_u32 v{TB+4}, {B2T}, v{TB+4}")
        for nt in range(4): a(f"ds_read_b128 {v(BR+4*nt,4)}, v{TB+4} offset:{nt*64}")
    for k in range(1, 4):
        for h in range(2):
            b = ACC + k * 16 + h * 8
            for j in range(4): a(f"v_cvt_pk_bf16_f32 v{b+j}, v{b+2*j}, v{b+2*j+1}")
            a(f"ds_write_b128 v{TB+k}, {v(b,4)} offset:{h*1024}")
    def addp(r):
        for k in range(8): a(f"v_dot2_f32_bf16 v{ACC+2*k}, v{r+k}, s88, v{ACC+2*k}\nv_dot2_f32_bf16 v{ACC+2*k+1}, v{r+k}, s89, v{ACC+2*k+1}")
    a("s_waitcnt lgkmcnt(0)\ns_barrier"); ts("_rb")
    for k in range(6): a(f"ds_read_b128 {v(ACC+16+4*k,4)}, v{TB} offset:{k*1024}")
    if ph == 4:
        for k in range(8): a(f"v_pk_add_f32 {v(ACC+2*k,2)}, {v(ACC+2*k,2)}, {v(BR+2*k,2)}")
    addp(RES)
    for s in range(3):
        a(f"s_waitcnt lgkmcnt({4-2*s})"); addp(ACC + 16 + 8 * s)
    for k in range(8): a(f"v_cvt_pk_bf16_f32 v{RES+k}, v{ACC+2*k}, v{ACC+2*k+1}")
    a(f"s_lshl_b32 {sT}, {RG}, 2\ns_add_u32 {sT}, {sT}, {W}")
    if L == 1 and ph == 4:
        for k in (0, 1, 4, 5): a(f"v_permlane16_swap_b32 v{RES+k}, v{RES+k+2}")
        a(f"v_bfe_u32 v{TB}, v{vL16}, 4, 4\nv_lshlrev_b32 v{TB}, 10, v{TB}\nv_bfe_u32 v{TB+1}, v{vL16}, 8, 1\nv_lshl_add_u32 v{TB}, v{TB+1}, 5, v{TB}")
        a(f"v_bfe_u32 v{TB+1}, v{vL16}, 9, 1\nv_lshl_add_u32 v{TB}, v{TB+1}, 4, v{TB}")
        a(f"s_lshl_b32 {sT}, {sT}, 14\ns_lshl_b32 {sT2}, {J8}, 7\ns_add_u32 {sT}, {sT}, {sT2}")
        for k in range(2): a(f"buffer_store_dwordx4 {v(RES+4*k,4)}, v{TB}, {sOUT}, {sT} offen offset:{64*k}")
        return
    xb, sb = (X1(L), ST1(L)) if ph == 2 else (X2, ST2)
    a(f"s_lshl_b32 {sT2}, {sT}, 14\ns_lshl_b32 {sT3}, {J8}, 11\ns_add_u32 {sT2}, {sT2}, {sT3}\ns_add_u32 {sT2}, {sT2}, {xb}")
    for k in range(2): a(f"buffer_store_dwordx4 {v(RES+4*k,4)}, v{vL16}, {sWS}, {sT2} offen offset:{1024*k}{SC}")
    a(f"v_accvgpr_read_b32 v{BR+2}, a{aONE}\nv_mov_b32 v{BR}, 0\nv_mov_b32 v{BR+1}, 0")
    for k in range(8): a(f"v_dot2_f32_bf16 v{BR}, v{RES+k}, v{BR+2}, v{BR}\nv_dot2_f32_bf16 v{BR+1}, v{RES+k}, v{RES+k}, v{BR+1}")
    xg_reduce([BR, BR + 1], BR + 4)
    a(f"s_lshl_b32 {sT}, {sT}, 10\ns_lshr_b32 {sT2}, {J8}, 1\ns_lshl_b32 {sT2}, {sT2}, 8\ns_add_u32 {sT}, {sT}, {sT2}")
    a(f"s_and_b32 {sT2}, {J8}, 1\ns_lshl_b32 {sT2}, {sT2}, 3\ns_add_u32 {sT}, {sT}, {sT2}\ns_add_u32 {sT}, {sT}, {sb}")
    a(f"s_mov_b64 exec, 0xffff\nbuffer_store_dwordx2 {v(BR,2)}, v{vL16}, {sWS}, {sT} offen{SC}\ns_mov_b64 exec, -1")
def flag_addr(L, off, grp, idx, sh=7):
    a(f"s_lshl_b32 {sBase2}, {grp}, {sh}\ns_add_u32 {sBase2}, {sBase2}, {FL(L)+off}\ns_lshl_b32 {sT3}, {idx}, 2\ns_add_u32 {sT3}, {sT3}, {W}\ns_lshl_b32 {sT3}, {sT3}, 2\ns_add_u32 {sT3}, {sT3}, {sBase2}")
def p2(L):
    def wof(c, nt, o=0, n=4): return v(64 + (c * 4 + nt) * 4 + o, n) if c < 3 else ag(240 + nt * 4 + o, n)
    a(f"s_add_u32 {sT2}, s63, {12*4096}\nv_add_u32 v{TB}, {sT2}, v{vT0}")
    for j in range(1, 4): a(f"v_xor_b32 v{TB+j}, {32*j}, v{TB}")
    ts("_qep"); flag_addr(L, 0, RG, J8); poll_addr("pq")
    a("s_waitcnt vmcnt(0)"); signal(sT3); ts("pqsig")
    for c in range(4):
        for nt in range(4):
            for h in range(2): a(tr(wof(c, nt, 2 * h, 2), TB + nt, c * 4096 + h * 2048))
    rot_bases(16384, PQ(L), 4096); set_vo(3584)
    KV, ZA, EP = BR, BR + 16, TB
    NUMS = [(228, 236, 240), (112, 116, 120)]
    a(f"v_bfe_u32 v{TB}, v{vL16}, 4, 1\nv_cmp_eq_u32_e64 s[90:91], 0, v{TB}\nv_lshlrev_b32 v{TB}, 6, v{TB}\nv_lshrrev_b32 v{TB+1}, 8, v{vL16}\nv_lshl_add_u32 v{TB}, v{TB+1}, 4, v{TB}")
    a(f"s_lshl_b32 s92, {W}, 13\ns_add_u32 s88, s92, {FL(L)+0x8000}\ns_add_u32 s92, s92, {KVACC(L)}\ns_add_u32 s93, s92, 4096\ns_lshl_b32 s94, {W}, 9\ns_add_u32 s94, s94, {KVACC(L)+0x8000}")
    a(f"s_mul_i32 {sBase}, {W}, {32*3584}\ns_lshl_b32 {sT}, {J16}, 8\ns_add_u32 {sBase}, {sBase}, {sT}\ns_lshl_b32 s95, {W}, 12")
    a(f"s_lshl_b32 {sT}, {W}, 5\ns_add_u32 {sBase2}, {sBase2}, {sT}\ns_waitcnt lgkmcnt(0)\ns_barrier")
    poll(sBase2, tch(L, "pq", TB + 5)); ts("pqok")
    for c in range(4):
        for mt in range(4): a(f"buffer_load_dwordx4 {v((mt*4+c)*4,4)}, v{vL16}, {sWS}, s{62+mt} offen offset:{c*1024} sc1")
    poll_addr("kv"); poll("s88", tch(L, "kv", TB + 5)); ts("kvok")
    for c in range(4):
        a(f"buffer_load_dwordx4 {v(ACC+32+4*c,4)}, v{TB}, {sWS}, s94 offen offset:{c*128} sc1")
        for h in (2 * c, 2 * c + 1): a(f"buffer_load_dwordx4 {v(ACC+4*h,4)}, v{vL16}, {sWS}, s{92+h//4} offen offset:{(h%4)*1024} sc1 ; @K{h}")
    dm = dma_wave(sW1, sBase, "s95", [(k * 4 * 32 * 3584 + cb * 128, (cb * 16 + 4 * k) * 4096) for k in range(4) for cb in range(2)])
    NE = 12
    for l in dm[:NE * 3 // 2]: a(l)
    for l in tch(L, "p2k", TB + 5): a(l)
    dm = dm[NE * 3 // 2:]
    for k in range(4): a(f"v_mov_b32 v{EP+k}, s61")
    for c in range(4):
        a(f"VMWAIT K{2*c+1}")
        for k in range(4 * c, 4 * c + 4): a(f"v_cvt_pk_bf16_f32 v{KV+k}, v{ACC+2*k}, v{ACC+2*k+1}")
        for p in range(2):
            t = ACC + 48 + 2 * c + p
            a(f"v_cvt_pk_bf16_f32 v{t}, v{ACC+32+4*c+2*p}, v{ACC+33+4*c+2*p}")
            a(f"v_cndmask_b32_e64 v{ZA+4*c+p}, 0, v{t}, s[90:91]\nv_cndmask_b32_e64 v{ZA+4*c+2+p}, v{t}, 0, s[90:91]")
    ts("_kvld")
    items = [(mt, c) for c in range(4) for mt in range(4)]
    def s1(k):
        mt, c = items[k]; p = (mt * 4 + c) * 4; N = NUMS[k & 1]
        return [mfma(v(N[2], 4), v(ZA + 4 * c, 4), v(p, 4), v(EP, 4)),
                mfma(v(N[0], 4), v(KV + 4 * c, 2), v(p, 2), "0", True), mfma(v(N[1], 4), v(KV + 4 * c + 2, 2), v(p + 2, 2), "0", True)]
    def s2(k):
        mt, c = items[k]; p = (mt * 4 + c) * 4; N = NUMS[k & 1]
        o = [f"v_rcp_f32 v{N[2]}, v{N[2]}", f"v_rcp_f32 v{N[2]+1}, v{N[2]+1}"]
        for j in range(8): o.append(f"v_mul_f32 v{N[j>>2]+(j&3)}, v{N[j>>2]+(j&3)}, v{N[2]+(j>>2)}")
        for j in range(4): o.append(f"v_cvt_pk_bf16_f32 v{p+j}, v{N[j>>1]+2*(j&1)}, v{N[j>>1]+2*(j&1)+1}")
        return o
    def s3(k):
        mt, c = items[k]; p = (mt * 4 + c) * 4
        return [mfma(v(ACC + (mt * 4 + nt) * 4, 4), wof(c, nt), v(p, 4), v(ACC + (mt * 4 + nt) * 4, 4) if c else "0") for nt in range(4)]
    for k in range(-1, 17):
        m = (s1(k + 1) if k + 1 < 16 else []) + (s3(k - 1) if k >= 1 else [])
        f = (s2(k) if 0 <= k < 16 else []) + (dm[2 * k:2 * k + 2] if k >= 0 else [])
        for l in m:
            a(l)
            for _ in range(2):
                if f: a(f.pop(0))
        for l in f: a(l)
    for l in tch(L, "p2e", TB + 7): a(l)
    ts("p2mm"); reduce_epi(L, 2)
    ts("_st"); flag_addr(L, 0x1000, RG, J8)
    a("s_waitcnt vmcnt(0)"); signal(sT3); ts("x1sig")
    a("s_barrier")
def gelu_pair(ac, mt, cs, b1, e, dst):
    return [f"v_pk_fma_f32 {v(e,2)}, {v(cs,2)}, {v(ST+2*mt,2)}, {v(b1,2)} op_sel:[0,1,0] op_sel_hi:[1,1,1]",
            f"v_pk_fma_f32 {v(ac,2)}, {v(ac,2)}, {v(ST+2*mt,2)}, {v(e,2)} op_sel:[0,0,0] op_sel_hi:[1,0,1]",
            f"v_pk_fma_f32 {v(e,2)}, {v(ac,2)}, {v(ac,2)}, s[90:91]",
            f"v_pk_mul_f32 {v(e,2)}, {v(e,2)}, {v(ac,2)}",
            f"v_exp_f32_e64 v{e}, -v{e}", f"v_exp_f32_e64 v{e+1}, -v{e+1}",
            f"v_pk_fma_f32 {v(e,2)}, {v(e,2)}, s[92:93], s[92:93]",
            f"v_rcp_f32_e64 v{e}, v{e}", f"v_rcp_f32_e64 v{e+1}, v{e+1}",
            f"v_pk_mul_f32 {v(ac,2)}, {v(ac,2)}, {v(e,2)}", f"v_cvt_pk_bf16_f32 v{dst}, v{ac}, v{ac+1}"]
def w2_dma(s0, n):
    a(f"s_mul_i32 {sBase}, {W}, {14*32768}\ns_lshl_b32 {sT}, {J8}, 7\ns_add_u32 {sBase}, {sBase}, {sT}\ns_mul_i32 {sT2}, {W}, {9*4096}")
    for k in range(n):
        a(f"s_add_u32 m0, {sT2}, {k*4096}\ns_add_u32 {sT}, {sBase}, {(s0+k)*32768}")
        for j in range(4): a(f"buffer_load_dwordx4 v{VO+j}, {sW2}, {sT} offen offset:{j*1024} lds")
def w2_tr(s0, n):
    a(f"s_mul_i32 {sT2}, {W}, {9*4096}\nv_add_u32 v{TB}, {sT2}, v{vT0}")
    for j in range(1, 4): a(f"v_xor_b32 v{TB+j}, {32*j}, v{TB}")
    for k in range(n):
        for nt in range(4):
            for h in range(2): a(tr(ag(((s0 + k) * 4 + nt) * 4 + 2 * h, 2), TB + nt, k * 4096 + h * 2048))
    a("s_waitcnt lgkmcnt(0)")
def a_bases(mt0s, xb, sb):
    a(f"s_lshl_b32 s63, {mt0s}, 10\ns_add_u32 s63, s63, {sb}\ns_lshl_b32 s62, {mt0s}, 14\ns_add_u32 s62, s62, {xb}\nv_add_u32 v{ST+4}, 16384, v{vL16}")
def p3(L):
    if L == 0:
        a(f"s_lshr_b32 {sT}, {W}, 1\ns_lshl_b32 {sT}, {sT}, 16\ns_and_b32 {sT2}, {W}, 1\ns_lshl_b32 {sT2}, {sT2}, 6")
        a(f"v_xor_b32 v{TB}, {sT2}, v{vT0}\nv_add_u32 v{TB}, {sT}, v{TB}\nv_xor_b32 v{TB+1}, 32, v{TB}")
        mainloop([dict(rd=(TB + k, c * 4096), mf=lambda b, c=c, k=k: [mfma(v(ACC + 4 * k, 4), b, ag(aONE, 4), v(ACC + 4 * k, 4) if c else "0")]) for c in range(16) for k in range(2)])
        a(f"s_lshl_b32 {sT}, {W}, 7\ns_add_u32 {sT}, {sT}, {CS1}\nv_lshrrev_b32 v{TB}, 8, v{vL16}\nv_lshl_add_u32 v{TB}, v{TB}, 4, {sT}")
        for k in range(2): a(f"ds_write_b128 v{TB}, {v(ACC+4*k,4)} offset:{64*k}")
        a("s_waitcnt lgkmcnt(0)")
    a(f"s_lshl_b32 {sT}, {W}, 1\ns_lshl_b32 {sT2}, {SG}, 3\ns_add_u32 {sT3}, {sT}, {sT2}")
    a_bases(sT3, X1(L), ST1(L))
    a(f"s_mul_i32 {sT3}, {sT3}, {56*1024}\ns_lshl_b32 {sT2}, {J16}, 12\ns_add_u32 {sT3}, {sT3}, {sT2}\ns_add_u32 s64, {sT3}, {HH(L)}\ns_add_u32 s65, s64, {56*1024}")
    a(f"s_mov_b32 s90, {hx(ALPHA*ALPHA/0.044715)}\ns_mov_b32 s91, s90\ns_mov_b32 s92, {hx(ALPHA)}\ns_mov_b32 s93, s92")
    a(f"v_lshrrev_b32 v{VO}, 8, v{vL16}\nv_lshlrev_b32 v{VO}, 4, v{VO}\nv_add_u32 v{VO}, {CS1}, v{VO}")
    for j in range(4): a(f"v_xor_b32 v{TB+j}, {32*j}, v{vT0}")
    idle = a.lab("ID")
    a(f"s_cmp_ge_u32 {J16}, 14\ns_cbranch_scc1 {idle}")
    a(f"s_lshl_b32 {sT}, {SG}, 1\ns_lshr_b32 {sT2}, {W}, 1\ns_add_u32 {sT}, {sT}, {sT2}\ns_lshl_b32 {sT}, {sT}, 7\ns_and_b32 {sT2}, {W}, 1\ns_lshl_b32 {sT2}, {sT2}, 3\ns_add_u32 {sT}, {sT}, {sT2}\ns_add_u32 {sT}, {sT}, {FL(L)+0x1000}")
    poll_addr(3); poll(sT, tch(L, "x1", TB + 5)); ts("x1ok")
    PF = 3; CB = BR + 16
    for c in range(PF):
        for l in a_loads(c, "X"): a(l)
    load_stats("s63", CB)
    for j in range(4): a(f"v_add_u32 v{TB+4+j}, 65536, v{TB+j}")
    fr = []
    for c in range(16):
        for nt in range(8):
            d = dict(rd=(TB + nt, c * 4096), mf=lambda b, c=c, nt=nt: [mfma(v(ACC + (mt * 8 + nt) * 4, 4), b, v(Areg(mt, c), 4), v(ACC + (mt * 8 + nt) * 4, 4) if c else "0") for mt in range(2)])
            if nt == 0: d["pm"] = [f"VMWAIT X{c}"]
            fr.append(d)
    spread(fr, [l for c in range(PF, 16) for l in a_loads(c, "X")], 0, 72)
    spread(fr, capture(lambda: stats_from_partials(CB, True, CB + 8)), 72, 112)
    if L == 0:
        fr[112]["pm"].append("s_barrier")
        if "h" not in "".join(TW.values()):
            HF = int(os.environ.get("HF", 72))
            spread(fr, [f"v_lshrrev_b32 v{VO+1}, 9, v{vL16}", f"v_mul_u32_u24 v{VO+1}, {56*1024-4096}, v{VO+1}", f"v_lshl_add_u32 v{VO+1}, v{vL16}, 3, v{VO+1}", f"buffer_load_dword a1, v{VO+1}, {sWS}, s64 offen"], HF, HF + 4)
    def csb(q, dst): return [f"ds_read_b128 {v(dst+4*k,4)}, v{VO} offset:{(k>>1)*512+(2*q+(k&1))*64}" for k in range(4)]
    CSR = [0, 16, 64, 80]
    spread(fr, [l for q in range(4) for l in csb(q, CSR[q])], 112, 128)
    mainloop(fr, ring=RINGA); ts("p3mm")
    a("s_waitcnt lgkmcnt(0)\n.p2align 3")
    for q in range(4):
        for mt in range(2):
            b = ACC + (mt * 8 + 2 * q) * 4
            for z in zip(*[gelu_pair(b + 2 * k, mt, CSR[q] + 2 * k, CSR[q] + 8 + 2 * k, CB + 2 * k, b + k) for k in range(4)]):
                for l in z: a(l)
            a(f"buffer_store_dwordx4 {v(b,4)}, v{vL16}, {sWS}, s{64+mt} offen offset:{q*1024}{SC}")
    flag_addr(L, 0x2000, SG, J16, 8)
    a("s_waitcnt vmcnt(0)"); signal(sT3); ts("hsig")
    a(f"{idle}:")
    if L == 0: a("s_barrier")
    if L == 0:
        set_vo(1024); w2_dma(0, 9); a("s_waitcnt vmcnt(0)"); w2_tr(0, 9); w2_dma(9, 5)
def p4(L):
    rot_bases(56 * 1024, HH(L), 14 * 1024)
    a(f"s_mul_i32 {sT}, {W}, 14\ns_lshr_b32 {sT}, {sT}, 2\ns_lshl_b32 {sT}, {sT}, 4\ns_and_b32 {sT2}, {RG}, 1\ns_lshl_b32 {sT2}, {sT2}, 3\ns_add_u32 {sT}, {sT}, {sT2}")
    a(f"s_lshl_b32 {sT2}, {SG}, 8\ns_add_u32 {sT}, {sT}, {sT2}\ns_add_u32 {sT}, {sT}, {FL(L)+0x2000}")
    poll_addr(2); poll(sT); ts("hok")
    def ld(s):
        o = []
        if s % 4 == 0 and s: o += [f"s_add_u32 s{62+mt}, s{62+mt}, 4096" for mt in range(4)]
        return o + [f"buffer_load_dwordx4 {v(((s%8)*4+mt)*4,4)}, v{vL16}, {sWS}, s{62+mt} offen offset:{(s%4)*1024} sc1 ; @H{s}_{mt}" for mt in range(4)]
    PF = 3
    if os.environ.get("REP4") and L == 1:
        for rep in range(2):
            for s in range(14):
                for l in ld(s): a(l)
                if s >= 7: a("s_waitcnt vmcnt(28)")
            a("s_waitcnt vmcnt(0)"); rot_bases(56 * 1024, HH(L), 14 * 1024); ts("rep")
    for s in range(PF):
        for l in ld(s): a(l)
    if L == 0:
        a(f"s_waitcnt vmcnt({4*PF})"); w2_tr(9, 5); a("s_barrier"); wq_base()
        a(f"s_lshr_b32 {sT}, {W}, 1\ns_mul_i32 {sT}, {sT}, {32*3072}\ns_add_u32 s94, {sBase}, {sT}\ns_and_b32 {sT}, {W}, 1\ns_lshl_b32 {sT}, {sT}, 10\ns_add_u32 s94, s94, {sT}\ns_lshl_b32 s95, {W}, 12")
    lds = [l for s in range(PF, 14) for l in ld(s)]
    if L == 0: lds += dma_wave(sWQ, "s94", "s95", [(k * 2 * 32 * 3072 + 1024, k * 4 * 4096) for k in range(8)])
    for s in range(14):
        for mt in range(4):
            a(f"VMWAIT H{s}_{mt}")
            for nt in range(4):
                a(mfma(v(ACC + (mt * 4 + nt) * 4, 4), ag((s * 4 + nt) * 4, 4), v(((s % 8) * 4 + mt) * 4, 4), v(ACC + (mt * 4 + nt) * 4, 4) if s else "0"))
                if nt in ((1, 3) if s < 3 or s > 7 else (1,)):
                    while lds:
                        l = lds.pop(0); a(l)
                        if l.startswith("buffer"): break
    for l in lds: a(l)
    ts("p4mm")
    reduce_epi(L, 4)
    if L == 0:
        flag_addr(L, 0x3000, RG, J8)
        a("s_waitcnt vmcnt(0)"); signal(sT3); ts("x2sig"); a("s_barrier")
        dma_split(sWQ, sBase, q_items(range(7)), [0, 1, 2, 3])
        a(f"s_and_b32 {sT}, {W}, 1\ns_lshl_b32 {sT}, {sT}, 1\ns_lshl_b32 {sT2}, {RG}, 2\ns_add_u32 {sT3}, {sT}, {sT2}")
        a_bases(sT3, X2, ST2)
        a(f"s_lshl_b32 {sT}, {sT}, 2\ns_add_u32 {sT}, {sT}, {sBase2}")
        poll_addr(3); poll(sT); ts("x2ok")
```
